```python
import torch

def _softmax(x, axis=-1):
    return torch.softmax(x, dim=axis)
def _gelu(x):
    return torch.nn.functional.gelu(x, approximate="tanh")
def _silu(x):
    return torch.nn.functional.silu(x)
def _sigmoid(x):
    return torch.sigmoid(x)
def _layernorm(x, axis=-1, eps=1e-5):
    m = x.mean(dim=axis, keepdim=True)
    v = x.var(dim=axis, keepdim=True, unbiased=False)
    return (x - m) / torch.sqrt(v + eps)
def _scatter_add(tgt, idx, src, axis=0):
    return tgt.clone().index_add_(axis, idx, src)
def _segment_sum(src, seg, n):
    out = torch.zeros((n,) + src.shape[1:], dtype=src.dtype)
    return out.index_add_(0, seg, src)
def _pad(x, pw):
    flat = tuple(v for pair in reversed(pw) for v in pair)
    return torch.nn.functional.pad(x, flat)

kernel_name = 'recurrent_scan__sliding_block_cached__dense_activation_squared_relu__prompt'

def setup_inputs():

    _w = (lambda a: (lambda t: t.to(torch.bfloat16) if t.is_floating_point() else t)(torch.as_tensor(a)))
    def _A_setup():
        B, Sq, D = 1, 2048, 512
        Hq, Hkv, Sk, Dh = 32, 8, 2048, 128
        assert Hq % Hkv == 0, (Hq, Hkv)
        return {
            "x": _w((lambda *s: torch.randn(*s, dtype=torch.bfloat16) * 0.05)(B, Sq, D)),
            "k_cache": _w((lambda *s: torch.randn(*s, dtype=torch.bfloat16) * 0.8)(B, Hkv, Sk, Dh)),
            "v_cache": _w((lambda *s: torch.randn(*s, dtype=torch.bfloat16) * 0.2)(B, Hkv, Sk, Dh)),
            "wq": _w((lambda *s: torch.randn(*s, dtype=torch.bfloat16) * 0.8)(D, Hq * Dh) * (D ** -0.5)),
            "wo": _w((lambda *s: torch.randn(*s, dtype=torch.bfloat16) * 0.2)(Hq * Dh, D) * ((Hq * Dh) ** -0.5)),
        }
    _A_in = _A_setup()

    def _B_setup():
        B, S, D, F = 1, 2048, 512, 1792
        return {
            "x": _w((lambda *s: torch.randn(*s, dtype=torch.bfloat16) * 0.05)(B, S, D)),
            "w1": _w((lambda *s: torch.randn(*s, dtype=torch.bfloat16) * 0.1)(D, F)),
            "b1": _w((lambda *s: torch.randn(*s, dtype=torch.bfloat16) * 0.4)(F)),
            "w2": _w((lambda *s: torch.randn(*s, dtype=torch.bfloat16) * 0.1)(F, D)),
            "b2": _w((lambda *s: torch.randn(*s, dtype=torch.bfloat16) * 6.4)(D)),
        }
    _B_in = _B_setup()

    return {
        "A_x": _A_in["x"],
        "A_k_cache": _A_in["k_cache"],
        "A_v_cache": _A_in["v_cache"],
        "A_wq": _A_in["wq"],
        "A_wo": _A_in["wo"],
        "B_x": _B_in["x"],
        "B_w1": _B_in["w1"],
        "B_b1": _B_in["b1"],
        "B_w2": _B_in["w2"],
        "B_b2": _B_in["b2"],
    }

def reference(A_x, A_k_cache, A_v_cache, A_wq, A_wo, B_x, B_w1, B_b1, B_w2, B_b2):
    def _A_ref(x, k_cache, v_cache, wq, wo):
        B, Sq, D = x.shape
        Hq, Dh = 32, 128
        Hkv, Sk = k_cache.shape[1], k_cache.shape[2]
        W = min(4096, max(256, Sk // 4))
        rep = Hq // Hkv
        q = (lambda x, *d: x.permute(*d))((x @ wq).reshape(B, Sq, Hq, Dh), 0, 2, 1, 3)
        k = (lambda x, n, axis: torch.repeat_interleave(x, n, dim=axis))(k_cache[:, :, Sk - W:, :], rep, axis=1)
        v = (lambda x, n, axis: torch.repeat_interleave(x, n, dim=axis))(v_cache[:, :, Sk - W:, :], rep, axis=1)
        scores = torch.einsum("bhqd,bhkd->bhqk", q, k) * (Dh ** -0.5)
        p = _softmax(scores, axis=-1)
        o = torch.einsum("bhqk,bhkd->bhqd", p, v)
        return (lambda x, *d: x.permute(*d))(o, 0, 2, 1, 3).reshape(B, Sq, Hq * Dh) @ wo

    def _B_ref(x, w1, b1, w2, b2):
        h = torch.einsum("bsd,df->bsf", x, w1) + b1
        zero = torch.zeros_like(h)
        r = torch.where(h > zero, h, zero)
        h = r * r
        out = torch.einsum("bsf,fd->bsd", h, w2) + b2
        return out

    x = A_x
    xn = _layernorm(x, axis=-1)
    s = _A_ref(xn, A_k_cache, A_v_cache, A_wq, A_wo)
    g = _silu(_B_ref(xn, B_w1, B_b1, B_w2, B_b2))
    return x + s * g
```

```python
import sys, struct, math

KNAME = "recurrent_scan__sliding_block_cached__dense_activation_squared_relu__prompt_kernel"
RS = 40960
XROW = 1040
WRING = [16640, 16640 + 6144, 16640 + 2 * 6144]
VSLOT = [16640, 20736, 0]
KSLOT = [36608, 29184, 24832]
MSLOT = [24832, 28928, 33024, 16640, 20736]
RED = 16640
H_OFF = 0
S_OFF = 8 << 20
F_OFF = 24 << 20
HF_OFF = F_OFF + 65536
WS_SIZE = 25 << 20
DBG_OFF = 32 << 20

def f2u(x): return struct.unpack("<I", struct.pack("<f", x))[0]

class G:
    def __init__(self, opts):
        self.L = []
        self.o = opts
        self.vm = []
        self.lg = []
    def e(self, s): self.L.append("    " + s)
    def lab(self, s): self.L.append(s + ":")
    def c(self, s): self.L.append("    ; " + s)
    def emit(self, it):
        if isinstance(it, str):
            self.e(it); return
        if isinstance(it, list):
            for x in it: self.emit(x)
            return
        kind = it[0]
        if kind == "vm":
            self.e(it[1]); self.vm.append(it[2])
        elif kind == "lg":
            self.e(it[1]); self.lg.append(it[2])
        elif kind == "wvm":
            self.e("s_waitcnt vmcnt(%d)" % self.cnt(self.vm, it[1], 63))
        elif kind == "wlg":
            self.e("s_waitcnt lgkmcnt(%d)" % self.cnt(self.lg, it[1], 15))
        elif kind == "wboth":
            self.e("s_waitcnt vmcnt(%d) lgkmcnt(%d)" % (self.cnt(self.vm, it[1], 63), self.cnt(self.lg, it[2], 15)))
        else:
            raise ValueError(kind)
    def cnt(self, lst, tags, mx):
        if not isinstance(tags, (list, tuple)): tags = [tags]
        last = -1
        for t in tags:
            idx = [i for i, x in enumerate(lst) if x == t]
            assert idx, "tag %r never issued" % (t,)
            last = max(last, idx[-1])
        return min(len(lst) - 1 - last, mx)
    def interleave(self, mf, fill, start=0, end=None, pre=None):
        n = len(mf)
        if end is None: end = n
        slots = [[] for _ in range(n)]
        if isinstance(fill, dict):
            for k, v in fill.items(): slots[k] += v
        else:
            self.spread(slots, fill, start, end)
        if pre: self.emit(pre)
        for i in range(n):
            self.emit(mf[i])
            for it in slots[i]: self.emit(it)
    @staticmethod
    def spread(slots, fill, start, end):
        m = len(fill); g = end - start
        for k, it in enumerate(fill):
            slots[start + (k * g) // m].append(it)

def vr(b, n=4): return "v[%d:%d]" % (b, b + n - 1)
def ar(b, n=4): return "a[%d:%d]" % (b, b + n - 1)
def sr(b, n=4): return "s[%d:%d]" % (b, b + n - 1)
def mfma(d, a, b, c): return "v_mfma_f32_32x32x16_bf16 %s, %s, %s, %s" % (d, a, b, c)

sW, sR, sG, sRC, sJ = 3, 4, 5, 6, 7
SX, SWQ, SW1, SK, SV, SWO, SW2, SWS, SOUT, SB1, SB2 = 44, 48, 52, 56, 60, 64, 68, 72, 76, 80, 84
sDBG = 38
sREG = 8
sA, sB_, sC, sD = 9, 10, 11, 12
sOWQ, sOW1, sOK, sOV, sOM, sOH, sOS = 13, 14, 15, 16, 17, 18, 19
sKD = [20, 21, 22]
sVD = [23, 24, 25]
sKR = [26, 27, 28]
sVR = [29, 30, 31]
sCNT, sBIG, sRET = 32, 33, 34
sT0 = 36
sSPIN = 40
sTS = 88
vLANE16 = 192
vTRW, vTRN = 193, 194
vB = [195, 196]
vWQ = [197, 198, 199, 200]
vW1 = [201, 202]
vKD, vVD = 203, 204
vWO = [205, 206, 207, 208]
vKR = [[209, 210], [211, 212]]
vVR = [213, 214]
vTAG = 216
vTS = [218, 219]
vLS = [220, 221]
vT = 224
vL32, vH = 222, 223

def gen(opts):
    g = G(opts)
    e = g.e
    stamps = opts.get("stamps", False)
    nst = [0]
    def stamp():
        if stamps:
            i = nst[0]; nst[0] += 1
            e("s_memtime s[90:91]")
            e("s_waitcnt lgkmcnt(0)")
            e("v_writelane_b32 v215, s90, %d" % i)
    hdr = open("recurrent_scan__sliding_block_cached__dense_activation_squared_relu__prompt.s.ref").read().split("\n")
    for ln in hdr:
        if ln.startswith("; @launch"): break
        g.L.append(ln)
    g.L.append("; @launch grid=(256,1,1) block=(256,1,1) lds=163840")
    g.L.append('.amdgcn_target "amdgcn-amd-amdhsa--gfx950"')
    g.L.append(".text")
    g.L.append(".globl " + KNAME)
    g.L.append(".p2align 8")
    g.L.append(".type %s,@function" % KNAME)
    g.lab(KNAME)
    e("s_cmp_ge_u32 s2, 256")
    e("s_cbranch_scc1 L_end")
    e("s_load_dwordx16 s[16:31], s[0:1], 0")
    e("s_load_dwordx8 s[32:39], s[0:1], 64")
    e("s_load_dwordx2 s[40:41], s[0:1], 96")
    if stamps:
        e("v_mov_b32 v215, 0")
        e("s_memtime s[90:91]")
    e("v_lshrrev_b32 v1, 6, v0")
    e("v_and_b32 v0, 63, v0")
    e("v_readfirstlane_b32 s%d, v1" % sW)
    e("s_lshr_b32 s%d, s2, 3" % sR)
    e("s_and_b32 s%d, s2, 7" % sG)
    e("s_lshl_b32 s%d, s%d, 2" % (sRC, sG))
    e("s_lshr_b32 s%d, s%d, 3" % (sA, sR))
    e("s_add_u32 s%d, s%d, s%d" % (sRC, sRC, sA))
    e("s_and_b32 s%d, s%d, 7" % (sJ, sR))
    e("s_mul_i32 s%d, s%d, %d" % (sREG, sW, RS))
    e("v_lshrrev_b32 v1, 3, v0")
    e("v_and_b32 v2, 7, v0")
    e("v_lshlrev_b32 v3, 10, v1")
    e("v_lshl_or_b32 v3, v2, 4, v3")
    e("v_mul_u32_u24 v4, %d, v1" % XROW)
    e("v_lshl_add_u32 v4, v2, 4, v4")
    e("v_add_u32 v%d, s%d, v4" % (vT + 31, sREG))
    e("s_lshl_b32 s%d, s%d, 6" % (sA, sR))
    e("s_lshl_b32 s%d, s%d, 4" % (sB_, sW))
    e("s_add_u32 s%d, s%d, s%d" % (sA, sA, sB_))
    e("s_lshl_b32 s%d, s%d, 10" % (sA, sA))
    e("s_add_u32 s%d, s%d, 8192" % (sB_, sA))
    e("s_waitcnt lgkmcnt(0)")
    if stamps:
        e("v_writelane_b32 v215, s90, 0"); nst[0] = 1
    def srd(d, p, size):
        e("s_mov_b32 s%d, s%d" % (d, p)); e("s_mov_b32 s%d, s%d" % (d + 1, p + 1))
        if size is not None: e("s_mov_b32 s%d, 0x%x" % (d + 2, size))
        e("s_mov_b32 s%d, 0x20000" % (d + 3))
    srd(SX, 16, 2048 * 512 * 2)
    XR = 128
    for i in range(16):
        rg, cb = i // 8, i % 8
        g.emit(("vm", "buffer_load_dwordx4 %s, v3, %s, s%d offen offset:%d" % (vr(XR + 4 * i), sr(SX), sB_ if rg else sA, cb * 128), "x%d" % i))
    srd(SWQ, 22, 512 * 4096 * 2)
    srd(SW1, 28, 512 * 1792 * 2)
    srd(SK, 18, None); srd(SV, 20, None)
    e("s_add_u32 s%d, s%d, 1" % (sA, sG))
    e("s_lshl_b32 s%d, s%d, 19" % (SK + 2, sA))
    e("s_lshl_b32 s%d, s%d, 19" % (SV + 2, sA))
    srd(SWO, 24, 4096 * 512 * 2)
    srd(SB1, 30, 1792 * 2)
    srd(SW2, 32, 1792 * 512 * 2)
    srd(SB2, 34, 512 * 2)
    srd(SOUT, 36, 2048 * 512 * 2)
    srd(SWS, 40, (64 << 20) if opts.get("dump") else WS_SIZE)
    e("v_lshlrev_b32 v%d, 4, v0" % vLANE16)
    e("v_and_b32 v%d, 31, v0" % vL32)
    e("v_lshrrev_b32 v%d, 5, v0" % vH)
    e("v_bfe_u32 v1, v0, 2, 2")
    e("v_and_b32 v2, 3, v0")
    e("v_lshrrev_b32 v4, 4, v0")
    e("v_and_b32 v5, 1, v4")
    e("v_lshlrev_b32 v6, 6, v4")
    e("v_lshl_or_b32 v6, v2, 4, v6")
    e("v_lshl_add_u32 v%d, v1, 13, v6" % vWQ[0])
    for b in range(1, 4):
        e("v_add_u32 v%d, %d, v%d" % (vWQ[b], b * (4 * 8192 - 1024), vWQ[0]))
    e("v_lshl_add_u32 v%d, v1, 8, v6" % vVD)
    e("v_lshlrev_b32 v6, 6, v5")
    e("v_lshl_or_b32 v6, v2, 4, v6")
    e("v_lshl_add_u32 v7, v%d, 2, v1" % vH)
    e("v_lshl_add_u32 v%d, v7, 10, v6" % vWO[0])
    for b in range(1, 4):
        e("v_add_u32 v%d, %d, v%d" % (vWO[b], b * (8192 - 1024), vWO[0]))
    e("v_mul_u32_u24 v8, 3584, v7")
    e("v_add_u32 v%d, v8, v6" % vW1[0])
    e("s_cmp_eq_u32 s%d, 3" % sW)
    e("s_cselect_b32 s%d, 0x40000000, 0" % sA)
    e("v_mul_lo_u32 v8, v5, s%d" % sA)
    e("v_add_u32 v%d, v%d, v8" % (vW1[0], vW1[0]))
    e("v_add_u32 v%d, %d, v%d" % (vW1[1], 8 * 3584 - 1024, vW1[0]))
    e("s_lshl_b32 s%d, s%d, 10" % (sOWQ, sG))
    e("s_lshl_b32 s%d, s%d, 8" % (sA, sW))
    e("s_add_u32 s%d, s%d, s%d" % (sOWQ, sOWQ, sA))
    e("s_mul_i32 s%d, s%d, 448" % (sOW1, sG))
    e("s_lshl_b32 s%d, s%d, 7" % (sA, sW))
    e("s_add_u32 s%d, s%d, s%d" % (sOW1, sOW1, sA))
    e("v_lshlrev_b32 v8, 4, v%d" % vH)
    for ft in range(2):
        for jj in range(2):
            g.emit(("vm", "buffer_load_dwordx4 %s, v8, %s, s%d offen offset:%d" % (vr(vT + 8 * ft + 4 * jj), sr(SB1), sOW1, 64 * ft + 32 * jj), "b1"))

    def dma_g1(s):
        slot = WRING[s % 3]
        it = []
        it.append(["s_add_u32 m0, s%d, %d" % (sREG, slot), "s_nop 0",
                   ("vm", "buffer_load_dwordx4 v%d, %s, s%d offen lds" % (vWQ[0], sr(SWQ), sOWQ), "w%d" % s)])
        for b in range(1, 4):
            x = [("vm", "buffer_load_dwordx4 v%d, %s, s%d offen offset:%d lds" % (vWQ[b], sr(SWQ), sOWQ, b * 1024), "w%d" % s)]
            it.append(x)
        it.append(["s_add_u32 m0, s%d, %d" % (sREG, slot + 4096), "s_add_u32 s%d, s%d, %d" % (sOWQ, sOWQ, 16 * 8192),
                   ("vm", "buffer_load_dwordx4 v%d, %s, s%d offen lds" % (vW1[0], sr(SW1), sOW1), "w%d" % s)])
        it.append([("vm", "buffer_load_dwordx4 v%d, %s, s%d offen offset:1024 lds" % (vW1[1], sr(SW1), sOW1), "w%d" % s),
                   "s_add_u32 s%d, s%d, %d" % (sOW1, sOW1, 16 * 3584)])
        return it
    for s in range(3): g.emit(dma_g1(s))

    e("s_or_b32 s%d, s2, s%d" % (sA, sW))
    e("s_cmp_lg_u32 s%d, 0" % sA)
    e("s_cbranch_scc1 L_notag")
    e("s_memrealtime s[%d:%d]" % (sT0, sT0 + 1))
    e("s_waitcnt lgkmcnt(0)")
    e("s_or_b32 s%d, s%d, 1" % (sA, sT0))
    e("v_mov_b32 v10, s%d" % sA)
    e("v_mov_b32 v11, s%d" % (sT0 + 1))
    e("v_mov_b32 v12, 0")
    e("global_store_dwordx2 v12, v[10:11], s[%d:%d] sc1" % (sDBG, sDBG + 1))
    g.lab("L_notag")

    e("v_and_b32 v8, 1, v2")
    e("v_lshrrev_b32 v9, 1, v2")
    e("v_lshl_or_b32 v8, v8, 1, v9")
    e("v_lshlrev_b32 v8, 3, v8")
    e("v_lshl_or_b32 v8, v5, 5, v8")
    e("v_lshl_or_b32 v8, v1, 6, v8")
    e("v_lshl_add_u32 v9, v%d, 11, v8" % vH)
    e("v_add_u32 v%d, s%d, v9" % (vTRW, sREG))
    e("v_add_u32 v%d, %d, v9" % (vVR[0], VSLOT[0]))
    e("v_add_u32 v%d, %d, v9" % (vVR[1], VSLOT[0] + 2 * RS))
    e("v_lshl_add_u32 v9, v%d, 10, v8" % vH)
    e("v_add_u32 v%d, s%d, v9" % (vTRN, sREG))
    e("v_and_b32 v8, 15, v0")
    e("v_mul_u32_u24 v9, %d, v8" % XROW)
    e("v_mul_u32_u24 v10, %d, v5" % RS)
    e("v_add_u32 v9, v9, v10")
    e("v_lshl_add_u32 v%d, v%d, 4, v9" % (vB[0], vH))
    e("v_add_u32 v%d, %d, v%d" % (vB[1], 2 * RS, vB[0]))
    e("v_xor_b32 v9, v8, v4")
    e("v_lshlrev_b32 v9, 4, v9")
    e("v_lshl_or_b32 v%d, v4, 8, v9" % vKD)
    e("v_and_b32 v9, 1, v1")
    e("v_lshrrev_b32 v11, 1, v1")
    e("v_lshl_or_b32 v9, v9, 1, v11")
    e("v_mul_u32_u24 v9, 1088, v9")
    e("v_add_u32 v9, v9, v10")
    e("v_lshl_add_u32 v9, v2, 8, v9")
    for par in range(2):
        e("v_or_b32 v11, %d, v%d" % (2 * par, vH))
        e("v_xor_b32 v11, v11, v2")
        e("v_lshl_add_u32 v%d, v11, 4, v9" % vKR[0][par])
        e("v_add_u32 v%d, %d, v%d" % (vKR[1][par], 2 * RS, vKR[0][par]))
    e("s_lshl_b32 s%d, s%d, 19" % (sOV, sG))
    e("s_lshl_b32 s%d, s%d, 12" % (sA, sW))
    e("s_add_u32 s%d, s%d, s%d" % (sOV, sOV, sA))
    e("s_add_u32 s%d, s%d, %d" % (sOV, sOV, 1536 * 256))
    e("s_sub_u32 s%d, s%d, %d" % (sOK, sOV, 32 * 256))
    e("s_mov_b32 s%d, 0x%x" % (sBIG, f2u(2.0 ** 30)))
    for i in range(128): e("v_accvgpr_write_b32 a%d, 0" % i)
    ONE = 16; SUM = [17, 18, 19, 20]; SQ = [21, 22, 23, 24]
    e("v_mov_b32 v%d, 0x3f803f80" % ONE)
    for x in SUM + SQ: e("v_mov_b32 v%d, 0" % x)
    for i in range(16):
        rg = i // 8
        g.emit(("wvm", "x%d" % i))
        for d in range(4):
            x = XR + 4 * i + d
            e("v_dot2c_f32_bf16 v%d, v%d, v%d" % (SUM[2 * rg + d % 2], x, ONE))
            e("v_dot2c_f32_bf16 v%d, v%d, v%d" % (SQ[2 * rg + d % 2], x, x))
    e("s_nop 2")
    for rg in range(2):
        e("v_add_f32 v%d, v%d, v%d" % (SUM[2 * rg], SUM[2 * rg], SUM[2 * rg + 1]))
        e("v_add_f32 v%d, v%d, v%d" % (SQ[2 * rg], SQ[2 * rg], SQ[2 * rg + 1]))
    regs4 = [SUM[0], SQ[0], SUM[2], SQ[2]]
    for pat in ("quad_perm:[1,0,3,2]", "quad_perm:[2,3,0,1]", "row_half_mirror"):
        e("s_nop 1")
        for x in regs4:
            e("v_add_f32_dpp v%d, v%d, v%d %s row_mask:0xf bank_mask:0xf" % (x, x, x, pat))
    RSTD = [26, 28]; NMR = [30, 32]
    e("s_mov_b32 s%d, 0x%x" % (sA, f2u(1.0 / 512)))
    e("s_mov_b32 s%d, 0x%x" % (sB_, f2u(1e-5)))
    for rg in range(2):
        m, q = SUM[2 * rg], SQ[2 * rg]
        e("v_mul_f32 v%d, s%d, v%d" % (m, sA, m))
        e("v_mul_f32 v%d, s%d, v%d" % (q, sA, q))
        e("v_fma_f32 v%d, -v%d, v%d, v%d" % (q, m, m, q))
        e("v_max_f32 v%d, 0, v%d" % (q, q))
        e("v_cvt_pk_bf16_f32 v34, v%d, v%d" % (m, q))
        e("v_lshlrev_b32 v%d, 16, v34" % m)
        e("v_and_b32 v%d, 0xffff0000, v34" % q)
        e("v_add_f32 v%d, s%d, v%d" % (q, sB_, q))
        e("v_cvt_pk_bf16_f32 v34, v%d, v%d" % (q, q))
        e("v_and_b32 v%d, 0xffff0000, v34" % q)
        e("v_sqrt_f32 v%d, v%d" % (q, q))
        e("s_nop 0")
        e("v_cvt_pk_bf16_f32 v34, v%d, v%d" % (q, q))
        e("v_and_b32 v%d, 0xffff0000, v34" % q)
        e("v_rcp_f32 v%d, v%d" % (RSTD[rg], q))
        e("s_nop 0")
        e("v_mul_f32 v%d, v%d, v%d" % (NMR[rg], m, RSTD[rg]))
        e("v_sub_f32 v%d, 0, v%d" % (NMR[rg], NMR[rg]))
    for i in range(16):
        rg, cb = i // 8, i % 8
        for d in range(4):
            x = XR + 4 * i + d
            t = 36 + 2 * d
            e("v_lshlrev_b32 v%d, 16, v%d" % (t, x))
            e("v_and_b32 v%d, 0xffff0000, v%d" % (t + 1, x))
        for d in range(4):
            t = 36 + 2 * d
            e("v_pk_fma_f32 %s, %s, %s, %s op_sel_hi:[1,0,0]" % (vr(t, 2), vr(t, 2), vr(RSTD[rg], 2), vr(NMR[rg], 2)))
        for d in range(4):
            x = XR + 4 * i + d
            t = 36 + 2 * d
            e("v_cvt_pk_bf16_f32 v%d, v%d, v%d" % (x, t, t + 1))
        e("ds_write_b128 v%d, %s offset:%d" % (vT + 31, vr(XR + 4 * i), rg * 8 * XROW + cb * 128))
    for i in range(128): e("v_mov_b32 v%d, 0" % i)
    g.emit(("wvm", "b1"))
    e("s_waitcnt lgkmcnt(0)")
    for ft in range(2):
        for k in range(8):
            src = vT + 8 * ft + k
            for qt in range(2):
                d = 128 + 16 * (2 * ft + qt) + 2 * k
                e("v_lshlrev_b32 v%d, 16, v%d" % (d, src))
                e("v_and_b32 v%d, 0xffff0000, v%d" % (d + 1, src))
    e("s_barrier")
    stamp()
    def g1_reads(s):
        p = s % 2; base = 128 + 32 * p; slot = WRING[s % 3]
        it = []
        for qt in range(2):
            it.append(("lg", "ds_read_b128 %s, v%d offset:%d" % (ar(base + 24 + 4 * qt), vB[qt], s * 32), "f%d" % s))
        for t in range(4):
            for a in range(2):
                it.append(("lg", "ds_read_b64_tr_b16 %s, v%d offset:%d" % (ar(base + 4 * t + 2 * a, 2), vTRW, slot + a * 1024 + t * 256), "f%d" % s))
        for t in range(2):
            for a in range(2):
                it.append(("lg", "ds_read_b64_tr_b16 %s, v%d offset:%d" % (ar(base + 16 + 4 * t + 2 * a, 2), vTRN, slot + 4096 + a * 512 + t * 256), "f%d" % s))
        return it
    def kdma(m0, tag):
        it = []
        for b in range(4):
            x = [m0(b), "s_nop 0" if b == 0 else None,
                 ("vm", "buffer_load_dwordx4 v%d, %s, s%d offen offset:%d lds" % (vKD, sr(SK), sOK, b * 1024), tag)]
            x = [x[0], "s_nop 0", x[2]]
            if b == 3: x.append("s_add_u32 s%d, s%d, %d" % (sOK, sOK, 64 * 256))
            it.append(x)
        return it
    def vdma(m0, tag):
        it = []
        for b in range(4):
            x = []
            if b == 0: x += [m0, "s_nop 0"]
            x.append(("vm", "buffer_load_dwordx4 v%d, %s, s%d offen offset:%d lds" % (vVD, sr(SV), sOV, b * 1024), tag))
            if b == 3: x.append("s_add_u32 s%d, s%d, %d" % (sOV, sOV, 64 * 256))
            it.append(x)
        return it
    def kdma_s(c): return kdma(lambda b: "s_add_u32 m0, s%d, %d" % (sREG, KSLOT[c % 3] + 64 * b), "k%d" % c)
    def vdma_s(st): return vdma("s_add_u32 m0, s%d, %d" % (sREG, VSLOT[st % 3]), "v%d" % st)

    g.emit(("wvm", "w0"))
    g.emit(g1_reads(0))
    for s in range(32):
        p = s % 2; base = 128 + 32 * p
        mf = []
        for t in range(6):
            for qt in range(2):
                acc = vr(16 * (2 * t + qt), 16)
                mf.append(mfma(acc, ar(base + 4 * t), ar(base + 24 + 4 * qt), acc))
        slots = [[] for _ in range(12)]
        pre = [("wlg", "f%d" % s)]
        if s + 1 < 32:
            pre = [("wboth", "w%d" % (s + 1), "f%d" % s)]
            G.spread(slots, g1_reads(s + 1), 0, 7)
        if s + 3 < 32: dm = dma_g1(s + 3)
        elif s == 29: dm = kdma_s(1)
        elif s == 30: dm = vdma_s(0)
        else: dm = kdma_s(2) + vdma_s(1)
        if s == 28: dm = dm + kdma_s(0)
        G.spread(slots, dm, 4 if len(dm) > 6 else 6, 12)
        g.interleave(mf, {k: v for k, v in enumerate(slots)}, pre=pre)
    stamp()
    e("v_mov_b32 v%d, 0" % vT)
    e("s_nop 0")
    g.emit(("vm", "global_load_dwordx2 %s, v%d, s[%d:%d] sc1" % (vr(vTAG, 2), vT, sDBG, sDBG + 1), "tag"))
    e("s_nop 7")
    e("s_nop 2")
    e("s_mov_b32 s%d, 0x%x" % (sA, f2u(math.log2(math.e) / math.sqrt(128.0))))
    e("s_mov_b32 s%d, s%d" % (sB_, sA))
    assert sA % 2 == 1
    e("v_mov_b32 v%d, s%d" % (vT + 2, sA))
    for k in range(64):
        e("v_pk_mul_f32 %s, %s, %s op_sel_hi:[1,0]" % (vr(2 * k, 2), vr(2 * k, 2), vr(vT + 2, 2)))
    for k in range(64):
        e("v_cvt_pk_bf16_f32 v%d, v%d, v%d" % (k, 2 * k, 2 * k + 1))
    def QF(ds, qt): return vr(8 * (2 * (ds // 2) + qt) + 4 * (ds % 2))
    g.emit(("wvm", ["k0", "k1"]))
    e("s_barrier")
    KF, VF = 128, 160
    def kreads(u, slot, dst, tag):
        return [("lg", "ds_read_b128 %s, v%d offset:%d" % (ar(dst + 4 * s), vKR[u][s % 2], slot + (s // 2) * 64), tag) for s in range(8)]
    def vreads(u, dst, tag, extra=0):
        it = []
        for ks in range(2):
            for dt in range(4):
                for a in range(2):
                    it.append(("lg", "ds_read_b64_tr_b16 %s, v%d offset:%d" % (ar(dst + 4 * (4 * ks + dt) + 2 * a, 2), vVR[u], extra + ks * RS + a * 1024 + dt * 256), tag))
        return it
    def S(p, qt): return 64 + 32 * p + 16 * qt
    def P(p, qt, ks): return 128 + 16 * p + 8 * qt + 4 * ks
    def NM(qt): return 160 + 16 * qt
    def qk(p, kf, first_c):
        mf = []
        for s in range(8):
            for qt in range(2):
                d = vr(S(p, qt), 16)
                c = d if s else (first_c(qt))
                mf.append(mfma(d, ar(kf + 4 * s), QF(s, qt), c))
        return mf
    def pv(p, vf):
        mf = []
        for ks in range(2):
            for dt in range(4):
                for qt in range(2):
                    d = ar(16 * (2 * dt + qt), 16)
                    mf.append(mfma(d, ar(vf + 4 * (4 * ks + dt)), vr(P(p, qt, ks)), d))
        return mf
    def sm(p):
        seq = []
        pairs = [(qt, k) for qt in range(2) for k in range(8)]
        def ex(i):
            qt, k = pairs[i]; t = vT + 2 * (i % 3)
            return ["v_exp_f32 v%d, v%d" % (t, S(p, qt) + 2 * k), "v_exp_f32 v%d, v%d" % (t + 1, S(p, qt) + 2 * k + 1)]
        def fin(i):
            qt, k = pairs[i]; t = vT + 2 * (i % 3)
            if k == 0: a = ["v_add_f32 v%d, v%d, v%d" % (vTS[qt], t, t + 1)]
            else: a = ["v_add_f32 v%d, v%d, v%d" % (vTS[qt], vTS[qt], t), "v_add_f32 v%d, v%d, v%d" % (vTS[qt], vTS[qt], t + 1)]
            return a + ["v_cvt_pk_bf16_f32 v%d, v%d, v%d" % (P(p, qt, k // 4) + k % 4, t, t + 1)]
        seq += ex(0)
        for i in range(16):
            nx = ex(i + 1) if i + 1 < 16 else ["s_nop 0"]
            f = fin(i)
            seq.append(nx[0]); seq.append(f[0])
            if len(nx) > 1: seq.append(nx[1])
            seq += f[1:]
        return seq
    rare_sites = []
    def check(p):
        n = len(rare_sites); rare_sites.append(p)
        return [["v_max_f32 v%d, v%d, v%d" % (vT, vTS[0], vTS[1]),
                 "v_cmp_lt_f32 vcc, s%d, v%d" % (sBIG, vT),
                 "s_cbranch_vccnz L_rare%d" % n,
                 "L_back%d:" % n,
                 "v_add_f32 v%d, v%d, v%d" % (vLS[0], vLS[0], vTS[0]),
                 "v_add_f32 v%d, v%d, v%d" % (vLS[1], vLS[1], vTS[1])]]
    g.emit(kreads(1, KSLOT[0], KF, "kf0"))
    g.emit(kreads(0, KSLOT[1], VF, "kf1"))
    hep = []
    e("s_lshl_b32 s%d, s%d, 1" % (sA, sR))
    e("s_mul_i32 s%d, s%d, %d" % (sOH, sA, 112 * 1024))
    e("s_mul_i32 s%d, s%d, %d" % (sA, sG, 14 * 1024))
    e("s_add_u32 s%d, s%d, s%d" % (sOH, sOH, sA))
    e("s_lshl_b32 s%d, s%d, 12" % (sA, sW))
    e("s_add_u32 s%d, s%d, s%d" % (sOH, sOH, sA))
    e("s_add_u32 s%d, s%d, %d" % (sB_, sOH, 112 * 1024))
    e("s_cmp_eq_u32 s%d, 3" % sW)
    e("s_cselect_b32 s%d, 0x40000000, s%d" % (sC, sOH))
    e("s_cselect_b32 s%d, 0x40000000, s%d" % (sD, sB_))
    for ft in range(2):
        for qt in range(2):
            b = 128 + 16 * (2 * ft + qt)
            for jj in range(2):
                for k in range(8): hep.append("v_max_f32 v%d, 0, v%d" % (b + 8 * jj + k, b + 8 * jj + k))
                for k in range(8): hep.append("v_mul_f32 v%d, v%d, v%d" % (b + 8 * jj + k, b + 8 * jj + k, b + 8 * jj + k))
                for k in range(4): hep.append("v_cvt_pk_bf16_f32 v%d, v%d, v%d" % (b + 8 * jj + k, b + 8 * jj + 2 * k, b + 8 * jj + 2 * k + 1))
                so = [[sOH, sB_], [sC, sD]][ft][qt]
                hep.append(("vm", "buffer_store_dwordx4 %s, v%d, %s, s%d offen offset:%d sc1" % (vr(b + 8 * jj), vLANE16, sr(SWS), so, (2 * ft + jj) * 1024), "hst"))
    nh = len(hep) // 2
    g.emit(hep[:24])
    g.interleave(qk(0, KF, lambda qt: "0"), hep[24:24 + 80], pre=[("wlg", "kf0")])
    g.emit(hep[104:])
    for qt in range(2):
        s0 = S(0, qt); t = vT + 2 * qt
        e("v_max3_f32 v%d, v%d, v%d, v%d" % (t, s0, s0 + 1, s0 + 2))
        for k in range(3, 15, 2): e("v_max3_f32 v%d, v%d, v%d, v%d" % (t, t, s0 + k, s0 + k + 1))
        e("v_max_f32 v%d, v%d, v%d" % (t, t, s0 + 15))
        e("v_mov_b32 v%d, v%d" % (t + 1, t))
    e("s_nop 1")
    for qt in range(2): e("v_permlane32_swap_b32 v%d, v%d" % (vT + 2 * qt, vT + 2 * qt + 1))
    e("s_nop 1")
    for qt in range(2):
        t = vT + 2 * qt
        e("v_max_f32 v%d, v%d, v%d" % (t, t, t + 1))
    for qt in range(2):
        t = vT + 2 * qt
        for k in range(16): e("v_sub_f32 v%d, 0, v%d" % (NM(qt) + k, t))
    for qt in range(2):
        t = vT + 2 * qt
        for k in range(16): e("v_sub_f32 v%d, v%d, v%d" % (S(0, qt) + k, S(0, qt) + k, t))
    nmc = lambda qt: vr(NM(qt), 16)
    slots = [[] for _ in range(16)]
    G.spread(slots, sm(0), 0, 16)
    G.spread(slots, kreads(1, KSLOT[1], KF, "kf"), 0, 8)
    g.interleave(qk(1, VF, nmc), {k: v for k, v in enumerate(slots)}, pre=[("wlg", "kf1")])
    e("v_mov_b32 v%d, v%d" % (vLS[0], vTS[0]))
    e("v_mov_b32 v%d, v%d" % (vLS[1], vTS[1]))
    for u in range(2):
        for par in range(2): e("v_add_u32 v%d, %d, v%d" % (vKR[u][par], KSLOT[2], vKR[u][par]))
    for i in range(3):
        e("s_add_u32 s%d, s%d, %d" % (sKD[i], sREG, KSLOT[(3 + i) % 3]))
        e("s_add_u32 s%d, s%d, %d" % (sVD[i], sREG, VSLOT[(2 + i) % 3]))
        e("s_mov_b32 s%d, 0x%x" % (sKR[i], (KSLOT[(3 + i) % 3] - KSLOT[(2 + i) % 3]) & 0xffffffff))
        e("s_mov_b32 s%d, 0x%x" % (sVR[i], (VSLOT[(1 + i) % 3] - VSLOT[i % 3]) & 0xffffffff))
    e("s_mov_b32 s%d, 0" % sCNT)
    stamp()
    e(".p2align 3")
    g.lab("L_attn")
    e("s_waitcnt vmcnt(4) lgkmcnt(0)")
    e("s_barrier")
    def rot(x):
        return ["s_mov_b32 s%d, s%d" % (sA, x[0]), "s_mov_b32 s%d, s%d" % (x[0], x[1]), "s_mov_b32 s%d, s%d" % (x[1], x[2]), "s_mov_b32 s%d, s%d" % (x[2], sA)]
    for half in range(2):
        p = (1 + half) % 2
        slots = [[] for _ in range(32)]
        G.spread(slots, sm(p), 0, 31)
        slots[31] += check(p)
        G.spread(slots, vreads(half, VF, "vf"), 0, 12)
        G.spread(slots, kreads(half, 0, KF, "kf"), 16, 26)
        slots[15].append("s_waitcnt lgkmcnt(0)")
        if half == 0:
            G.spread(slots, kdma(lambda b: "s_add_u32 m0, s%d, %d" % (sKD[0], 64 * b), "kl"), 12, 16)
            G.spread(slots, vdma("s_mov_b32 m0, s%d" % sVD[0], "vl"), 26, 30)
            slots[31].append("s_waitcnt lgkmcnt(0)")
        else:
            G.spread(slots, rot(sKD) + rot(sVD), 12, 16)
            upd = ["v_add_u32 v%d, s%d, v%d" % (vVR[u], sVR[0], vVR[u]) for u in range(2)]
            upd += ["v_add_u32 v%d, s%d, v%d" % (vKR[u][par], sKR[0], vKR[u][par]) for u in range(2) for par in range(2)]
            G.spread(slots, upd, 26, 29)
            G.spread(slots, rot(sKR) + rot(sVR) + ["s_add_u32 s%d, s%d, 1" % (sCNT, sCNT)], 29, 31)
        g.interleave(qk(half, KF, nmc) + pv(half, VF), {k: v for k, v in enumerate(slots)})
    e("s_cmp_lt_u32 s%d, 7" % sCNT)
    e("s_cbranch_scc1 L_attn")
    stamp()
    e("s_waitcnt vmcnt(0) lgkmcnt(0)")
    g.vm = []; g.lg = []
    e("s_barrier")
    e("s_mov_b32 s%d, 0" % sSPIN)
    g.lab("L_tagchk")
    e("v_cmp_eq_u32 vcc, 0, v%d" % vTAG)
    e("s_cbranch_vccnz L_tagwait")
    g.lab("L_tagok")
    e("s_lshl_b32 s%d, s%d, 8" % (sA, sR))
    e("s_lshl_b32 s%d, s%d, 5" % (sB_, sG))
    e("s_add_u32 s%d, s%d, s%d" % (sA, sA, sB_))
    e("s_lshl_b32 s%d, s%d, 3" % (sB_, sW))
    e("s_add_u32 s%d, s%d, s%d" % (sA, sA, sB_))
    e("s_add_u32 s%d, s%d, 0x%x" % (sA, sA, HF_OFF))
    e("v_mov_b32 v%d, 0" % (vT + 8))
    e("s_mov_b64 exec, 1")
    g.emit(("vm", "buffer_store_dwordx2 %s, v%d, %s, s%d offen sc1" % (vr(vTAG, 2), vT + 8, sr(SWS), sA), "hflag"))
    e("s_mov_b64 exec, -1")
    e("s_lshl_b32 s%d, s%d, 19" % (sOM, sG))
    e("s_lshl_b32 s%d, s%d, 8" % (sA, sW))
    e("s_add_u32 s%d, s%d, s%d" % (sOM, sOM, sA))
    def mdma(n):
        it = []
        srdn = SWO if n < 32 else SW2
        pre = ["s_add_u32 m0, s%d, %d" % (sREG, MSLOT[n % 5])]
        if n == 16: pre.append("s_sub_u32 s%d, s%d, %d" % (sOM, sOM, 512 * 1024 - 128))
        elif n == 32:
            pre += ["s_mul_i32 s%d, s%d, %d" % (sOM, sW, 448 * 1024), "s_lshl_b32 s%d, s%d, 7" % (sA, sJ), "s_add_u32 s%d, s%d, s%d" % (sOM, sOM, sA)]
        else: pre.append("s_nop 0")
        for b in range(4):
            x = pre if b == 0 else []
            x = x + [("vm", "buffer_load_dwordx4 v%d, %s, s%d offen offset:%d lds" % (vWO[b], sr(srdn), sOM, b * 1024), "m%d" % n)]
            if b == 3: x.append("s_add_u32 s%d, s%d, %d" % (sOM, sOM, 32 * 1024))
            it.append(x)
        return it
    g.emit(vreads(0, VF, "v14"))
    smx = sm(1)
    g.emit(smx[:24])
    slots = [[] for _ in range(16)]
    G.spread(slots, smx[24:], 0, 15)
    slots[15] += check(1)
    G.spread(slots, vreads(1, KF, "v15"), 0, 12)
    g.interleave(pv(0, VF), {k: v for k, v in enumerate(slots)}, pre=[("wlg", "v14")])
    slots = [[] for _ in range(16)]
    G.spread(slots, mdma(0) + mdma(1) + mdma(2) + mdma(3), 0, 16)
    lt = []
    for qt in range(2): lt.append("v_mov_b32 v%d, v%d" % (vT + 2 * qt, vLS[qt]))
    lt.append("s_nop 1")
    for qt in range(2): lt.append("v_permlane32_swap_b32 v%d, v%d" % (vT + 2 * qt, vLS[qt]))
    lt.append("s_nop 1")
    for qt in range(2): lt.append("v_add_f32 v%d, v%d, v%d" % (vLS[qt], vLS[qt], vT + 2 * qt))
    for qt in range(2): lt.append("v_rcp_f32 v%d, v%d" % (vT + 2 * qt, vLS[qt]))
    lt.append("s_lshl_b32 s%d, s%d, 8" % (sB_, sW))
    for qt in range(2): lt.append("v_add_u32 v%d, s%d, v%d" % (vT + 4 + qt, sB_, vB[qt]))
    G.spread(slots, lt, 2, 14)
    g.interleave(pv(1, KF), {k: v for k, v in enumerate(slots)}, pre=[("wlg", "v15")])
    e("s_nop 7"); e("s_nop 3")
    stamp()
    for dt in range(4):
        for qt in range(2):
            for jj in range(2):
                a0 = 16 * (2 * dt + qt) + 8 * jj
                t = 64 + 8 * ((2 * qt + jj) % 4)
                for k in range(8): e("v_accvgpr_read_b32 v%d, a%d" % (t + k, a0 + k))
                for k in range(4): e("v_pk_mul_f32 %s, %s, %s op_sel_hi:[1,0]" % (vr(t + 2 * k, 2), vr(t + 2 * k, 2), vr(vT + 2 * qt, 2)))
                o = 96 + 4 * ((2 * qt + jj) % 4) + 16 * (dt % 2)
                for k in range(4): e("v_cvt_pk_bf16_f32 v%d, v%d, v%d" % (o + k, t + 2 * k, t + 2 * k + 1))
                e("ds_write_b128 v%d, %s offset:%d" % (vT + 4 + qt, vr(o), dt * 64 + jj * 32))
    e("s_waitcnt lgkmcnt(0)")
    e("s_barrier")
    stamp()
    g.lg = []
    g.emit(mdma(4))
    AF = 128
    def mreads(n):
        it = []
        base = AF + 16 * (n % 2); slot = MSLOT[n % 5]
        for st in range(2):
            if n < 16:
                for qt in range(2):
                    it.append(("lg", "ds_read_b128 %s, v%d offset:%d" % (ar(16 * n + 8 * st + 4 * qt), vB[qt], (2 * n + st) * 32), "r%d" % n))
            for t in range(2):
                for a in range(2):
                    it.append(("lg", "ds_read_b64_tr_b16 %s, v%d offset:%d" % (vr(base + 8 * st + 4 * t + 2 * a, 2), vTRN, slot + st * 2048 + a * 512 + t * 256), "r%d" % n))
        return it
    def hloads(n):
        t = n - 32
        it = []
        for st in range(2):
            for qt in range(2):
                it.append(("vm", "buffer_load_dwordx4 %s, v%d, %s, s%d offen offset:%d sc1" % (ar(16 * t + 8 * st + 4 * qt), vLANE16, sr(SWS), sB_ if qt else sOH, st * 1024), "h%d" % n))
        it.append(["s_add_u32 s%d, s%d, 2048" % (sOH, sOH), "s_add_u32 s%d, s%d, 2048" % (sB_, sB_)])
        return it
    def sstores(ps):
        it = []
        accb = 64 * ps
        for T in range(4):
            for jj in range(2):
                b = accb + 16 * T + 8 * jj
                o = 160 + 4 * ((2 * T + jj) % 8)
                x = ["v_cvt_pk_bf16_f32 v%d, v%d, v%d" % (o + k, b + 2 * k, b + 2 * k + 1) for k in range(4)]
                so = sOS if (2 * T + jj) < 4 else sC
                x.append(("vm", "buffer_store_dwordx4 %s, v%d, %s, s%d offen offset:%d sc1" % (vr(o), vLANE16, sr(SWS), so, ((2 * T + jj) % 4) * 1024), "s%d" % ps))
                it.append(x)
        return it
    def s_setup(ps):
        return ["s_lshl_b32 s%d, s%d, 2" % (sA, sR), "s_add_u32 s%d, s%d, s%d" % (sA, sA, sW), "s_lshl_b32 s%d, s%d, 4" % (sA, sA),
                "s_add_u32 s%d, s%d, s%d" % (sA, sA, sG), "s_lshl_b32 s%d, s%d, 13" % (sA, sA),
                "s_add_u32 s%d, s%d, 0x%x" % (sOS, sA, S_OFF + ps * 65536), "s_add_u32 s%d, s%d, 4096" % (sC, sOS)]
    def sflag(ps):
        return [("wvm", "s%d" % ps),
                "s_lshl_b32 s%d, s%d, 2" % (sA, sR), "s_add_u32 s%d, s%d, s%d" % (sA, sA, sW), "s_lshl_b32 s%d, s%d, 5" % (sA, sA),
                "s_add_u32 s%d, s%d, s%d" % (sA, sA, sG), "s_lshl_b32 s%d, s%d, 3" % (sA, sA),
                "s_add_u32 s%d, s%d, 0x%x" % (sA, sA, F_OFF + ps * 128),
                "s_mov_b64 exec, 1",
                ("vm", "buffer_store_dwordx2 %s, v%d, %s, s%d offen sc1" % (vr(vTAG, 2), vT + 8, sr(SWS), sA), "sflag%d" % ps),
                "s_mov_b64 exec, -1"]
    vFO = vT + 10
    vFL = vT + 12
    e("v_and_b32 v%d, 0x70, v%d" % (vFO, vLANE16))
    e("v_lshrrev_b32 v%d, 1, v%d" % (vFO, vFO))
    hpoll_addr = ["s_lshl_b32 s%d, s%d, 8" % (sD, sRC), "s_lshl_b32 s%d, s%d, 6" % (sA, sW), "s_add_u32 s%d, s%d, s%d" % (sD, sD, sA), "s_add_u32 s%d, s%d, 0x%x" % (sD, sD, HF_OFF)]
    poll = "buffer_load_dwordx2 %s, v%d, %s, s%d offen sc1" % (vr(vFL, 2), vFO, sr(SWS), sD)
    g.emit(("wvm", "m0"))
    g.emit(mreads(0))
    for n in range(46):
        base = AF + 16 * (n % 2)
        accb = 64 if 16 <= n < 32 else 0
        bb = 16 * (n % 16) if n < 32 else 16 * (n - 32)
        mf = []
        for st in range(2):
            for t in range(2):
                for qt in range(2):
                    acc = vr(accb + 16 * (2 * t + qt), 16)
                    first = (n in (0, 16, 32)) and st == 0
                    mf.append(mfma(acc, vr(base + 8 * st + 4 * t), ar(bb + 8 * st + 4 * qt), "0" if first else acc))
        slots = [[] for _ in range(8)]
        wv = []
        if n + 1 < 46: wv.append("m%d" % (n + 1))
        if n >= 32: wv.append("h%d" % n)
        pre = [("wboth", wv, "r%d" % n)]
        if n + 1 < 46: G.spread(slots, mreads(n + 1), 0, 5)
        late = []
        if n + 5 < 46: late += mdma(n + 5)
        if n == 28:
            late.insert(0, [("wvm", "hpoll"), "v_cmp_ne_u64 vcc, %s, %s" % (vr(vFL, 2), vr(vTAG, 2)), "s_cbranch_vccnz L_hwait", "L_hok:",
                            "s_lshl_b32 s%d, s%d, 1" % (sA, sRC), "s_mul_i32 s%d, s%d, %d" % (sOH, sA, 112 * 1024),
                            "s_mul_i32 s%d, s%d, %d" % (sA, sW, 28 * 1024), "s_add_u32 s%d, s%d, s%d" % (sOH, sOH, sA),
                            "s_add_u32 s%d, s%d, %d" % (sB_, sOH, 112 * 1024)])
        if 32 <= n + 4 < 46: late += hloads(n + 4)
        if n == 22: late += [hpoll_addr + [("vm", poll, "hpoll")]]
        for ps in range(2):
            k = n - (17 + 16 * ps)
            if k == -1: late += [s_setup(ps)]
            if 0 <= k < 8: late += [sstores(ps)[k]] if ps == 0 else []
            if ps == 1 and 0 <= k < 4: late += sstores(1)[2 * k:2 * k + 2]
        if n == 30: late += [sflag(0)]
        if n == 42: late += [sflag(1)]
        if late: G.spread(slots, late, 3, 8)
        g.interleave(mf, {k: v for k, v in enumerate(slots)}, pre=pre)
        if n in (15, 31): stamp()
    stamp()
    e("s_lshl_b32 s%d, s%d, 3" % (sD, sRC))
    e("s_add_u32 s%d, s%d, s%d" % (sD, sD, sJ))
    e("s_lshl_b32 s%d, s%d, 16" % (sOS, sD))
    e("s_lshl_b32 s%d, s%d, 7" % (sD, sD))
    e("s_add_u32 s%d, s%d, 0x%x" % (sD, sD, F_OFF))
    g.emit(("vm", poll, "spoll"))
    e("s_lshl_b32 s%d, s%d, 11" % (sA, sW))
    e("s_add_u32 s%d, s%d, s%d" % (sOS, sOS, sA))
    e("s_add_u32 s%d, s%d, 0x%x" % (sOS, sOS, S_OFF))
    vXO = vT + 14
    e("v_lshlrev_b32 v%d, 10, v%d" % (vXO, vL32))
    e("v_lshl_or_b32 v%d, v%d, 4, v%d" % (vXO, vH, vXO))
    e("v_lshlrev_b32 v%d, 4, v%d" % (vXO + 1, vH))
    e("s_lshr_b32 s%d, s%d, 1" % (sA, sW))
    e("s_lshl_b32 s%d, s%d, 6" % (sA, sA))
    e("s_lshl_b32 s%d, s%d, 7" % (sB_, sJ))
    e("s_add_u32 s%d, s%d, s%d" % (sB_, sB_, sA))
    e("s_and_b32 s%d, s%d, 1" % (sA, sW))
    e("s_lshl_b32 s%d, s%d, 15" % (sA, sA))
    e("s_lshl_b32 s%d, s%d, 16" % (sC, sRC))
    e("s_add_u32 s%d, s%d, s%d" % (sC, sC, sA))
    e("s_add_u32 s%d, s%d, s%d" % (sC, sC, sB_))
    XV, BV = 128, 136
    for jj in range(2):
        g.emit(("vm", "buffer_load_dwordx4 %s, v%d, %s, s%d offen offset:%d" % (vr(XV + 4 * jj), vXO, sr(SX), sC, 32 * jj), "xf"))
        g.emit(("vm", "buffer_load_dwordx4 %s, v%d, %s, s%d offen offset:%d" % (vr(BV + 4 * jj), vXO + 1, sr(SB2), sB_, 32 * jj), "xf"))
    e("v_add_u32 v%d, s%d, v%d" % (vT, sREG, vLANE16))
    e("s_nop 3")
    for T in range(4):
        for q4 in range(4):
            e("ds_write_b128 v%d, %s offset:%d" % (vT, vr(16 * T + 4 * q4), RED + T * 4096 + q4 * 1024))
    g.emit(("wvm", "spoll"))
    e("v_cmp_ne_u64 vcc, %s, %s" % (vr(vFL, 2), vr(vTAG, 2)))
    e("s_cbranch_vccnz L_swait")
    g.lab("L_sok")
    SV_ = 64
    for gp in range(8):
        for jj in range(2):
            g.emit(("vm", "buffer_load_dwordx4 %s, v%d, %s, s%d offen offset:%d sc1" % (vr(SV_ + 8 * gp + 4 * jj), vLANE16, sr(SWS), sOS, jj * 1024), "sl%d" % gp))
        e("s_add_u32 s%d, s%d, 8192" % (sOS, sOS))
    e("s_lshl_b32 s%d, s%d, 12" % (sA, sW))
    e("v_add_u32 v%d, s%d, v%d" % (vT, sA, vLANE16))
    e("v_add_u32 v%d, %d, v%d" % (vT + 1, 2 * RS, vT))
    e("s_waitcnt lgkmcnt(0)")
    e("s_barrier")
    for rho in range(4):
        for q4 in range(4):
            e("ds_read_b128 %s, v%d offset:%d" % (vr(16 * rho + 4 * q4), vT + rho // 2, RED + (rho % 2) * RS + q4 * 1024))
    e("s_waitcnt lgkmcnt(8)")
    for k in range(16): e("v_add_f32 v%d, v%d, v%d" % (k, k, 16 + k))
    e("s_waitcnt lgkmcnt(0)")
    for k in range(16): e("v_add_f32 v%d, v%d, v%d" % (32 + k, 32 + k, 48 + k))
    for k in range(16): e("v_add_f32 v%d, v%d, v%d" % (k, k, 32 + k))
    def rnd(regs):
        for k in range(0, len(regs), 2):
            e("v_cvt_pk_bf16_f32 v%d, v%d, v%d" % (regs[k + 1], regs[k], regs[k + 1]))
        for k in range(0, len(regs), 2):
            e("v_lshlrev_b32 v%d, 16, v%d" % (regs[k], regs[k + 1]))
            e("v_and_b32 v%d, 0xffff0000, v%d" % (regs[k + 1], regs[k + 1]))
    F = list(range(16))
    rnd(F)
    g.emit(("wvm", "xf"))
    for k in range(8):
        e("v_lshlrev_b32 v%d, 16, v%d" % (16 + 2 * k, BV + k))
        e("v_and_b32 v%d, 0xffff0000, v%d" % (17 + 2 * k, BV + k))
    for k in range(16): e("v_add_f32 v%d, v%d, v%d" % (k, k, 16 + k))
    rnd(F)
    e("s_mov_b32 s%d, 0x%x" % (sA, f2u(-math.log2(math.e))))
    for k in range(16): e("v_mul_f32 v%d, s%d, v%d" % (16 + k, sA, k))
    for k in range(16): e("v_exp_f32 v%d, v%d" % (16 + k, 16 + k))
    for k in range(16): e("v_add_f32 v%d, 1.0, v%d" % (16 + k, 16 + k))
    for k in range(16): e("v_rcp_f32 v%d, v%d" % (16 + k, 16 + k))
    for k in range(16): e("v_mul_f32 v%d, v%d, v%d" % (k, k, 16 + k))
    rnd(F)
    for gp in range(8):
        g.emit(("wvm", "sl%d" % gp))
        for k in range(8):
            src = SV_ + 8 * gp + k
            if gp == 0:
                e("v_lshlrev_b32 v%d, 16, v%d" % (16 + 2 * k, src))
                e("v_and_b32 v%d, 0xffff0000, v%d" % (17 + 2 * k, src))
            else:
                e("v_lshlrev_b32 v%d, 16, v%d" % (32 + 2 * k, src))
                e("v_and_b32 v%d, 0xffff0000, v%d" % (33 + 2 * k, src))
        if gp:
            for k in range(8): e("v_pk_add_f32 %s, %s, %s" % (vr(16 + 2 * k, 2), vr(16 + 2 * k, 2), vr(32 + 2 * k, 2)))
    SS = list(range(16, 32))
    rnd(SS)
    for k in range(16): e("v_mul_f32 v%d, v%d, v%d" % (k, k, 16 + k))
    rnd(F)
    for k in range(8):
        e("v_lshlrev_b32 v%d, 16, v%d" % (16 + 2 * k, XV + k))
        e("v_and_b32 v%d, 0xffff0000, v%d" % (17 + 2 * k, XV + k))
    for k in range(16): e("v_add_f32 v%d, v%d, v%d" % (k, k, 16 + k))
    for k in range(8): e("v_cvt_pk_bf16_f32 v%d, v%d, v%d" % (32 + k, 2 * k, 2 * k + 1))
    for jj in range(2):
        e("buffer_store_dwordx4 %s, v%d, %s, s%d offen offset:%d" % (vr(32 + 4 * jj), vXO, sr(SOUT), sC, 32 * jj))
    if stamps:
        e("s_waitcnt vmcnt(0)")
        stamp()
        e("s_lshl_b32 s%d, s2, 2" % sA)
        e("s_add_u32 s%d, s%d, s%d" % (sA, sA, sW))
        e("s_lshl_b32 s%d, s%d, 8" % (sA, sA))
        e("s_add_u32 s%d, s%d, 0x%x" % (sA, sA, F_OFF + 0x20000))
        e("v_lshrrev_b32 v0, 2, v%d" % vLANE16)
        e("buffer_store_dword v215, v0, %s, s%d offen" % (sr(SWS), sA))
    g.lab("L_end")
    e("s_endpgm")
    def spin(lab, back, load, cmp):
        g.lab(lab)
        e("s_sleep 2")
        for x in load: e(x)
        e("s_add_u32 s%d, s%d, 1" % (sSPIN, sSPIN))
        e("s_cmp_gt_u32 s%d, 0x%x" % (sSPIN, 1 << 22))
        e("s_cbranch_scc1 %s" % back)
        e("s_waitcnt vmcnt(0)")
        e(cmp)
        e("s_cbranch_vccnz %s" % lab)
        e("s_branch %s" % back)
    spin("L_tagwait", "L_tagok", ["v_mov_b32 v%d, 0" % vT, "s_nop 0", "global_load_dwordx2 %s, v%d, s[%d:%d] sc1" % (vr(vTAG, 2), vT, sDBG, sDBG + 1)], "v_cmp_eq_u32 vcc, 0, v%d" % vTAG)
    cmpf = "v_cmp_ne_u64 vcc, %s, %s" % (vr(vFL, 2), vr(vTAG, 2))
    spin("L_hwait", "L_hok", [poll], cmpf)
    spin("L_swait", "L_sok", [poll], cmpf)
    for n, p in enumerate(rare_sites):
        g.lab("L_rare%d" % n)
        e("s_call_b64 s[%d:%d], L_resc%d" % (sRET, sRET + 1, p))
        e("s_branch L_back%d" % n)
    for p in range(2):
        g.lab("L_resc%d" % p)
        e("s_nop 7"); e("s_nop 7")
        D = [vT + 8 + 8, vT + 8 + 10]
        for qt in range(2):
            s0 = S(p, qt); t = D[qt]
            e("v_max3_f32 v%d, v%d, v%d, v%d" % (t, s0, s0 + 1, s0 + 2))
            for k in range(3, 15, 2): e("v_max3_f32 v%d, v%d, v%d, v%d" % (t, t, s0 + k, s0 + k + 1))
            e("v_max3_f32 v%d, v%d, v%d, 0" % (t, t, s0 + 15))
            e("v_mov_b32 v%d, v%d" % (t + 1, t))
        e("s_nop 1")
        for qt in range(2): e("v_permlane32_swap_b32 v%d, v%d" % (D[qt], D[qt] + 1))
        e("s_nop 1")
        for qt in range(2): e("v_max_f32 v%d, v%d, v%d" % (D[qt], D[qt], D[qt] + 1))
        for qt in range(2): e("v_exp_f32 v%d, -v%d" % (D[qt] + 1, D[qt]))
        for qt in range(2):
            for k in range(16):
                e("v_sub_f32 v%d, v%d, v%d" % (S(0, qt) + k, S(0, qt) + k, D[qt]))
                e("v_sub_f32 v%d, v%d, v%d" % (S(1, qt) + k, S(1, qt) + k, D[qt]))
                e("v_sub_f32 v%d, v%d, v%d" % (NM(qt) + k, NM(qt) + k, D[qt]))
            e("v_mul_f32 v%d, v%d, v%d" % (vLS[qt], vLS[qt], D[qt] + 1))
        for dt in range(4):
            for qt in range(2):
                a0 = 16 * (2 * dt + qt)
                for k4 in range(0, 16, 4):
                    for k in range(4): e("v_accvgpr_read_b32 v%d, a%d" % (vT + k, a0 + k4 + k))
                    for k in range(4): e("v_mul_f32 v%d, v%d, v%d" % (vT + k, vT + k, D[qt] + 1))
                    for k in range(4): e("v_accvgpr_write_b32 a%d, v%d" % (a0 + k4 + k, vT + k))
        for x in sm(p): e(x)
        e("s_nop 1")
        e("s_setpc_b64 s[%d:%d]" % (sRET, sRET + 1))
    g.L.append('.section .rodata,"a"')
    g.L.append(".p2align 6")
    g.L.append(".amdhsa_kernel " + KNAME)
    g.L += ["  .amdhsa_next_free_vgpr 512", "  .amdhsa_next_free_sgpr 102", "  .amdhsa_accum_offset 256",
            "  .amdhsa_group_segment_fixed_size 0", "  .amdhsa_kernarg_size 104", "  .amdhsa_user_sgpr_count 2",
            "  .amdhsa_user_sgpr_kernarg_segment_ptr 1", "  .amdhsa_system_sgpr_workgroup_id_x 1", ".end_amdhsa_kernel"]
    txt = "\n".join(g.L) + "\n"
    txt = "\n".join((ln.strip() if ln.strip().endswith(":") and ln.strip().startswith("L_") else ln) for ln in txt.split("\n"))
    return txt

if __name__ == "__main__":
    opts = {}
    out = "recurrent_scan__sliding_block_cached__dense_activation_squared_relu__prompt.s"
    for a in sys.argv[1:]:
        if a.startswith("-o"): out = a[2:]
        elif "=" in a:
            k, v = a.split("="); opts[k] = int(v)
        else: opts[a] = True
    open(out, "w").write(gen(opts))
```

```python
import sys, struct, math, re

KNAME = "recurrent_scan__sliding_block_cached__dense_activation_squared_relu__prompt_kernel"
RS = 40960
XROW = 1040
RSL = [20480, 24576, 28672, 32768, 36864]
def aslot(n): return RSL[(n - 43) % 5]
K0S, KA, VA, KB, VB = 16640, 20992, 25344, 29440, 33792
BSLOT = [16640, 20736, 24832, 28928, 33024]
S_OFF = 8 << 20
F_OFF = 24 << 20
HF_OFF = F_OFF + 65536
WS_SIZE = 25 << 20

def f2u(x): return struct.unpack("<I", struct.pack("<f", x))[0]

def cls_cost(it):
    if isinstance(it, list):
        cc = [cls_cost(x) for x in it]
        return (1 if all(x[0] == 1 for x in cc) else 3, sum(x[1] for x in cc))
    if isinstance(it, tuple):
        if it[0] == "vm": return (0, 8)
        if it[0] == "lg": return (0, 4)
        return (3, 4)
    s = it.strip()
    if s.endswith(":"): return (3, 0)
    m = s.split()[0]
    if m in ("v_exp_f32", "v_rcp_f32", "v_sqrt_f32", "v_rsq_f32") or m.startswith("v_pk_"): return (2, 8)
    if m.startswith("v_"): return (2, 4)
    if m == "s_nop": return (2, 4 * (int(s.split()[1]) + 1))
    if m in ("s_waitcnt", "s_barrier") or m.startswith("s_cbranch"): return (3, 4)
    return (1, 4)

class Sched:
    def __init__(self, g, mf, cap=None):
        self.g = g; self.mf = mf; self.n = len(mf)
        self.base = [8 if "16x16" in m else 24 for m in mf]
        self.caps = list(self.base) if cap is None else [cap] * self.n
        self.slots = [[] for _ in mf]; self.load = [0] * self.n; self.nvm = [0] * self.n; self.nlg = [0] * self.n
        self.pos = {}; self.seq = 0; self.maxlg = 1
    def reserve(self, gap, c): self.load[gap] += c
    def put(self, sid, it, lo, hi=None, force=False, slack=None):
        if hi is None: hi = self.n - 1
        c, cost = cls_cost(it)
        pg, pc = self.pos.get(sid, (-1, 0))
        start = max(lo, pg if pc <= c else pg + 1)
        assert start <= hi, ("window", sid, it, lo, hi, pg)
        isvm = isinstance(it, tuple) and it[0] == "vm"
        islg = isinstance(it, tuple) and it[0] == "lg"
        if slack is not None: hi = min(hi, max(start, lo + slack))
        t = start
        def full(t):
            return self.load[t] + cost > self.caps[t] or (isvm and self.nvm[t]) or (islg and self.base[t] == 8 and self.nlg[t] >= self.maxlg)
        if not force:
            while t <= hi and full(t): t += 1
            if t > hi:
                t = min(range(start, hi + 1), key=lambda x: (self.load[x] - self.caps[x] + (8 if isvm and self.nvm[x] else 0), x))
        self.slots[t].append((c, self.seq, it)); self.seq += 1
        self.load[t] += cost; self.nvm[t] += isvm; self.nlg[t] += islg
        self.pos[sid] = (t, c)
        return t
    def spread(self, sid, items, lo, hi, asap=False, slack=None):
        m = len(items)
        for k, it in enumerate(items):
            tgt = lo if asap else lo + (k * (hi + 1 - lo)) // m
            self.put(sid, it, min(tgt, hi), hi if slack is None else min(self.n - 1, hi + 4), slack=slack)
    def level(self, sid, items, lo, hi, side=None):
        tot = sum(cls_cost(x)[1] for x in items)
        ex = 0
        while sum(max(0, self.base[i] + ex - self.load[i]) for i in range(lo, hi + 1)) < tot + 4 * (1 + len([x for x in items if cls_cost(x)[1] > 4]) // 2): ex += 4
        save = self.caps[lo:hi + 1]
        for i in range(lo, hi + 1): self.caps[i] = self.base[i] + ex
        for it in items:
            if side and isinstance(it, tuple): self.put(side, it, self.pos[sid][0] + 1, force=True)
            else: self.put(sid, it, lo, hi)
        self.caps[lo:hi + 1] = save
    def emit(self, marks=None):
        for i in range(self.n):
            self.g.emit(self.mf[i])
            for _, _, it in sorted(self.slots[i], key=lambda x: (x[0], x[1])): self.g.emit(it)
            if marks and i in marks: marks[i]()
        return sum(max(0, l - b) for l, b in zip(self.load, self.base))

class G:
    def __init__(self, opts):
        self.L = []; self.o = opts; self.vm = []; self.lg = []
    def e(self, s): self.L.append(s if s.endswith(":") else "    " + s)
    def lab(self, s): self.L.append(s + ":")
    def emit(self, it):
        if isinstance(it, str): self.e(it); return
        if isinstance(it, list):
            for x in it: self.emit(x)
            return
        kind = it[0]
        if kind == "vm": self.e(it[1]); self.vm.append(it[2])
        elif kind == "lg": self.e(it[1]); self.lg.append(it[2])
        elif kind == "wvm": self.e("s_waitcnt vmcnt(%d)" % self.cnt(self.vm, it[1], 63))
        elif kind == "wlg": self.e("s_waitcnt lgkmcnt(%d)" % self.cnt(self.lg, it[1], 15))
        elif kind == "wboth":
            self.e("s_waitcnt vmcnt(%d) lgkmcnt(%d)" % (self.cnt(self.vm, it[1], 63), self.cnt(self.lg, it[2], 15)))
        else: raise ValueError(kind)
    def cnt(self, lst, tags, mx):
        if not isinstance(tags, (list, tuple)): tags = [tags]
        last = -1
        for t in tags:
            idx = [i for i, x in enumerate(lst) if x == t]
            assert idx, "tag %r never issued" % (t,)
            last = max(last, idx[-1])
        return min(len(lst) - 1 - last, mx)

def vr(b, n=4): return "v[%d:%d]" % (b, b + n - 1)
def ar(b, n=4): return "a[%d:%d]" % (b, b + n - 1)
def sr(b, n=4): return "s[%d:%d]" % (b, b + n - 1)
def mfma(d, a, b, c): return "v_mfma_f32_32x32x16_bf16 %s, %s, %s, %s" % (d, a, b, c)
def mfma16(d, a, b, c): return "v_mfma_f32_16x16x32_bf16 %s, %s, %s, %s" % (d, a, b, c)

sW, sR, sG, sRC, sJ, sREG = 3, 4, 5, 6, 7, 8
sA, sB_, sC, sD, sE = 9, 10, 11, 12, 13
sP, sOPF, sOK, sOV, sOM, sOH, sOS = 14, 15, 16, 17, 18, 19, 20
sKD, sKSUM, sVD, sVSUM, sKR, sVR, sK0, sBO, sOH2, sOS2, sXO = 21, 22, 23, 24, 25, 26, 27, 28, 29, 30, 31
sCNT, sBIG, sRET = 32, 33, 34
sT0 = 36
sDBG = 38
sSPIN, sOW2, sPB = 40, 41, 42
SX, SWQ, SW1, SK, SV, SWO, SW2, SWS, SOUT, SB1, SB2 = 44, 48, 52, 56, 60, 64, 68, 72, 76, 80, 84
sIDX, sB2O, sU, sINV, sPOLL, sF = 88, 89, 92, 93, 94, 95
vLANE16 = 192; vTRN = 193; vB = [194, 195]
vWQ = [196, 197, 198, 199]; vW1 = [200, 201, 202, 203]; vWO = [204, 205, 208, 209]
vTR = [206, 207]
vKD, vVD = 208, 209
vKR = [[210, 211], [212, 213]]; vVR = [214, 215]
vTAG = 216
vTS = [218, 219]; vLS = [220, 221]
vRS = [218, 219, 220, 221]
vST = 222; vL128 = 223
vT = 224; AF = 224
GP = 16

def gen(opts):
    g = G(opts); e = g.e
    GG = opts.get("G", 2)
    stamps = opts.get("stamps", False)
    nst = [0]
    def stamp(fine=False):
        if stamps and not opts.get("light") and (not fine or opts.get("fine")):
            i = nst[0]; nst[0] += 1
            e("s_memtime s[90:91]"); e("s_memrealtime s[96:97]"); e("s_waitcnt lgkmcnt(0)")
            e("v_writelane_b32 v%d, s90, %d" % (vST, i)); e("v_writelane_b32 v%d, s96, %d" % (vST, 32 + i))
    hdr = open("recurrent_scan__sliding_block_cached__dense_activation_squared_relu__prompt.s.ref").read().split("\n")
    for ln in hdr:
        if ln.startswith("; @launch"): break
        g.L.append(ln)
    g.L.append("; @launch grid=(256,1,1) block=(256,1,1) lds=163840")
    g.L += ['.amdgcn_target "amdgcn-amd-amdhsa--gfx950"', ".text", ".globl " + KNAME, ".p2align 8", ".type %s,@function" % KNAME]
    g.lab(KNAME)
    e("s_cmp_ge_u32 s2, 256")
    e("s_cbranch_scc1 L_end")
    for d, off in ((SX, 0), (SW1, 48), (SWQ, 24), (SK, 8), (SV, 16), (SWO, 32), (SB1, 56), (SW2, 64), (SB2, 72), (SOUT, 80), (sDBG, 88), (SWS, 96)):
        e("s_load_dwordx2 s[%d:%d], s[0:1], %d" % (d, d + 1, off))
    if stamps:
        e("v_mov_b32 v%d, 0" % vST); e("s_memtime s[90:91]"); e("s_memrealtime s[96:97]")
    L0 = 64
    e("v_lshrrev_b32 v65, 6, v0")
    e("v_and_b32 v%d, 63, v0" % L0)
    e("v_readfirstlane_b32 s%d, v65" % sW)
    e("s_lshr_b32 s%d, s2, 3" % sIDX)
    e("s_and_b32 s%d, s2, 7" % sE)
    lg = {1: 0, 2: 1, 4: 2, 8: 3}[GG]
    e("s_lshr_b32 s%d, s%d, %d" % (sP, sIDX, lg))
    e("s_lshr_b32 s%d, s%d, %d" % (sB_, sE, 3 - lg))
    e("s_lshl_b32 s%d, s%d, %d" % (sB_, sB_, 5 - lg))
    e("s_add_u32 s%d, s%d, s%d" % (sR, sB_, sP))
    vXL, vXW = 67, 68
    e("v_lshrrev_b32 v65, 3, v%d" % L0)
    e("v_and_b32 v69, 7, v%d" % L0)
    e("v_lshlrev_b32 v%d, 10, v65" % vXL)
    e("v_lshl_or_b32 v%d, v69, 4, v%d" % (vXL, vXL))
    e("s_lshl_b32 s%d, s%d, 2" % (sA, sR))
    e("s_add_u32 s%d, s%d, s%d" % (sA, sA, sW))
    e("s_lshl_b32 s%d, s%d, 14" % (sA, sA))
    e("s_add_u32 s%d, s%d, 8192" % (sB_, sA))
    for d, size in ((SX, 2048 * 512 * 2), (SW1, 512 * 1792 * 2), (SWQ, 512 * 4096 * 2), (SK, 0x20000), (SV, 0x20000), (SWO, 0x80000),
                    (SB1, 1792 * 2), (SW2, 1792 * 512 * 2), (SB2, 1024), (SOUT, 2048 * 512 * 2), (SWS, WS_SIZE)):
        e("s_mov_b32 s%d, 0x%x" % (d + 2, size)); e("s_mov_b32 s%d, 0x20000" % (d + 3))
    e("s_waitcnt lgkmcnt(0)")
    if stamps:
        e("v_writelane_b32 v%d, s90, 0" % vST); e("v_writelane_b32 v%d, s96, 62" % vST); e("v_writelane_b32 v%d, s96, 32" % vST); nst[0] = 1
    XR = 0
    for i in range(16):
        rg, cb = i // 8, i % 8
        g.emit(("vm", "buffer_load_dwordx4 %s, v%d, %s, s%d offen offset:%d" % (vr(XR + 4 * i), vXL, sr(SX), sB_ if rg else sA, cb * 128), "x%d" % i))
    stamp(True)
    e("v_lshlrev_b32 v%d, 7, v%d" % (vL128, L0))
    if opts.get("cpf", 1):
        e("s_getpc_b64 s[%d:%d]" % (sPB, sPB + 1))
        g.lab("L_pc")
        e("s_and_b32 s%d, s%d, 7" % (sB_, sIDX))
        e("s_lshl_b32 s%d, s%d, 2" % (sB_, sB_))
        e("s_add_u32 s%d, s%d, s%d" % (sB_, sB_, sW))
        e("s_lshl_b32 s%d, s%d, 11" % (sB_, sB_))
        e("v_and_b32 v66, 0x780, v%d" % vL128)
        e("v_add_u32 v66, s%d, v66" % sB_)
        e("v_min_u32 v66, L_codeend-L_pc-4, v66")
        g.emit(("vm", "global_load_dword v66, v66, s[%d:%d]" % (sPB, sPB + 1), "cpf"))
    e("s_and_b32 s%d, s%d, %d" % (sB_, sE, 8 // GG - 1))
    e("s_lshl_b32 s%d, s%d, %d" % (sB_, sB_, lg))
    e("s_and_b32 s%d, s%d, %d" % (sC, sIDX, GG - 1))
    e("s_add_u32 s%d, s%d, s%d" % (sG, sB_, sC))
    e("s_lshl_b32 s%d, s%d, 2" % (sRC, sE))
    e("s_lshr_b32 s%d, s%d, 3" % (sB_, sIDX))
    e("s_add_u32 s%d, s%d, s%d" % (sRC, sRC, sB_))
    e("s_and_b32 s%d, s%d, 7" % (sJ, sIDX))
    e("s_mul_i32 s%d, s%d, %d" % (sREG, sW, RS))
    e("v_mul_u32_u24 v70, %d, v65" % XROW)
    e("v_add_u32 v70, s%d, v70" % sREG)
    e("v_lshl_add_u32 v%d, v69, 4, v70" % vXW)
    H, R_, C_, T4, T2 = 71, 72, 73, 74, 75
    e("v_lshrrev_b32 v%d, 5, v%d" % (H, L0))
    e("v_bfe_u32 v%d, v%d, 2, 2" % (R_, L0))
    e("v_and_b32 v%d, 3, v%d" % (C_, L0))
    e("v_lshrrev_b32 v%d, 4, v%d" % (T4, L0))
    e("v_and_b32 v%d, 1, v%d" % (T2, T4))
    e("v_lshlrev_b32 v76, 6, v%d" % T2)
    e("v_lshl_or_b32 v76, v%d, 4, v76" % C_)
    e("v_lshl_add_u32 v77, v%d, 2, v%d" % (H, R_))
    e("s_lshr_b32 s%d, s%d, 1" % (sA, sG))
    e("s_mul_i32 s%d, s%d, 7" % (sU, sA))
    e("s_and_b32 s%d, s%d, 1" % (sA, sG))
    e("s_lshl_b32 s%d, s%d, 2" % (sA, sA))
    e("s_add_u32 s%d, s%d, s%d" % (sA, sA, sW))
    e("s_add_u32 s%d, s%d, s%d" % (sU, sU, sA))
    e("s_cmp_eq_u32 s%d, 7" % sA)
    e("s_cselect_b32 s%d, 0x40000000, 0" % sINV)
    e("v_mul_u32_u24 v78, 3584, v77")
    e("v_add3_u32 v%d, v78, v76, s%d" % (vW1[0], sINV))
    def dmaoffs(vo, stride, n=4):
        it = ["v_add_u32 v%d, %d, v%d" % (vo[1], 8 * stride - 1024, vo[0])]
        if n == 4:
            it += ["v_xor_b32 v%d, 32, v%d" % (vo[2], vo[0]), "v_add_u32 v%d, %d, v%d" % (vo[2], 2 * (8 * stride - 1024), vo[2]),
                   "v_add_u32 v%d, %d, v%d" % (vo[3], 8 * stride - 1024, vo[2])]
        return it
    g.emit(dmaoffs(vW1, 3584))
    RG = opts.get("rg", 1); lrg = {1: 0, 2: 1, 4: 2}[RG]
    e("s_and_b32 s%d, s%d, %d" % (sK0, sP, 16 // RG - 1))
    e("s_lshl_b32 s%d, s%d, 7" % (sOH, sU))
    e("s_mul_i32 s%d, s%d, %d" % (sOM, sK0, RG * 32 * 3584))
    e("s_add_u32 s%d, s%d, s%d" % (sOM, sOM, sOH))
    e("s_lshl_b32 s%d, s%d, %d" % (sBO, sK0, 6 + lrg))
    W1TOT = 512 * 3584
    def adma(n):
        ps = n // 16
        srdn, vo = (SW1, vW1) if ps == 0 else (SWQ, vWQ)
        pre = ["s_add_u32 m0, s%d, %d" % (sREG, aslot(n))]
        if n == 16: pre += ["s_mov_b32 s%d, s%d" % (sOM, sF)]
        elif n > 16:
            pre += ["s_add_u32 s%d, s%d, %d" % (sOM, sOM, (1 << 18) + (128 if n == 32 else 0))]
            if n % RG == 0: pre += ["s_and_b32 s%d, s%d, 0x3fffff" % (sOM, sOM)]
        elif n > 0:
            pre += ["s_add_u32 s%d, s%d, %d" % (sOM, sOM, 32 * 3584)]
            if n % RG == 0: pre += [["s_cmp_ge_u32 s%d, %d" % (sOM, W1TOT), "s_cselect_b32 s%d, s%d, s%d" % (sOM, sOH, sOM)]]
        else: pre.append("s_nop 0")
        return pre + [("vm", "buffer_load_dwordx4 v%d, %s, s%d offen offset:%d lds" % (vo[b], sr(srdn), sOM, b * 1024), "m%d" % n) for b in range(4)]
    e("v_lshl_add_u32 v78, v%d, 1, v%d" % (T2, H))
    e("v_lshlrev_b32 v79, 3, v%d" % C_)
    e("v_lshl_or_b32 v79, v%d, 6, v79" % R_)
    e("v_lshl_or_b32 v79, v%d, 5, v79" % T2)
    e("v_lshl_add_u32 v79, v78, 10, v79")
    e("v_add_u32 v%d, s%d, v79" % (vTR[0], sREG))
    e("v_xor_b32 v%d, 32, v%d" % (vTR[1], vTR[0]))
    e("v_and_b32 v80, 15, v%d" % L0)
    e("v_mul_u32_u24 v79, %d, v80" % XROW)
    e("v_lshl_add_u32 v%d, v78, 4, v79" % vB[0])
    e("v_add_u32 v%d, %d, v%d" % (vB[1], 2 * RS, vB[0]))
    vBR = [110, 111]
    for k in range(2): e("v_add_u32 v%d, s%d, v%d" % (vBR[k], sBO, vB[k]))
    e("v_add_u32 v81, %d, v79" % (2 * RS))
    late = []
    a = late.append
    a("v_lshl_add_u32 v%d, v77, 13, v76" % vWQ[0]); late += dmaoffs(vWQ, 8192)
    a("v_lshl_add_u32 v%d, v77, 10, v76" % vWO[0]); late += dmaoffs(vWO, 1024, 2)
    a("v_lshlrev_b32 v%d, 4, v%d" % (vLANE16, L0))
    a("v_lshlrev_b32 v82, 3, v%d" % T4)
    a("v_lshlrev_b32 v76, 6, v%d" % T4)
    a("v_lshl_or_b32 v76, v%d, 4, v76" % C_)
    a("v_lshl_add_u32 v%d, v%d, 8, v76" % (vVD, R_))
    a("v_and_b32 v76, 1, v%d" % C_)
    a("v_lshrrev_b32 v77, 1, v%d" % C_)
    a("v_lshl_or_b32 v76, v76, 1, v77")
    a("v_lshlrev_b32 v76, 3, v76")
    a("v_lshl_or_b32 v76, v%d, 5, v76" % T2)
    a("v_lshl_or_b32 v76, v%d, 6, v76" % R_)
    a("v_lshl_add_u32 v77, v%d, 11, v76" % H)
    a("v_add_u32 v%d, %d, v77" % (vVR[0], VA))
    a("v_add_u32 v%d, %d, v77" % (vVR[1], VA + 2 * RS))
    a("v_lshl_add_u32 v77, v%d, 10, v76" % H)
    a("v_add_u32 v%d, s%d, v77" % (vTRN, sREG))
    a("v_xor_b32 v77, v80, v%d" % T4)
    a("v_lshlrev_b32 v77, 4, v77")
    a("v_lshl_or_b32 v%d, v%d, 8, v77" % (vKD, T4))
    a("v_and_b32 v77, 1, v%d" % R_)
    a("v_lshrrev_b32 v76, 1, v%d" % R_)
    a("v_lshl_or_b32 v77, v77, 1, v76")
    a("v_mul_u32_u24 v77, 1088, v77")
    a("v_mul_u32_u24 v76, %d, v%d" % (RS, T2))
    a("v_add_u32 v77, v77, v76")
    a("v_lshl_add_u32 v77, v%d, 8, v77" % C_)
    for par in range(2):
        a("v_or_b32 v76, %d, v%d" % (2 * par, H))
        a("v_xor_b32 v76, v76, v%d" % C_)
        a("v_lshl_add_u32 v%d, v76, 4, v77" % vKR[0][par])
        a("v_add_u32 v%d, %d, v%d" % (vKR[1][par], 2 * RS, vKR[0][par]))
    lates = []
    a = lates.append
    a("s_lshl_b32 s%d, s%d, 10" % (sF, sG)); a("s_lshl_b32 s%d, s%d, 8" % (sA, sW)); a("s_add_u32 s%d, s%d, s%d" % (sF, sF, sA))
    a("s_lshl_b32 s%d, s%d, %d" % (sA, sK0, 18 + lrg)); a("s_add_u32 s%d, s%d, s%d" % (sF, sF, sA))
    a("s_lshl_b32 s%d, s%d, 19" % (sA, sG))
    a(["s_add_u32 s%d, s%d, s%d" % (SWO, SWO, sA), "s_addc_u32 s%d, s%d, 0" % (SWO + 1, SWO + 1)])
    a("s_add_u32 s%d, s%d, %d" % (sA, sA, 1536 * 256))
    for d in (SK, SV): a(["s_add_u32 s%d, s%d, s%d" % (d, d, sA), "s_addc_u32 s%d, s%d, 0" % (d + 1, d + 1)])
    a("s_lshl_b32 s%d, s%d, %d" % (sOV, sP, 14 + (1 if GG == 8 else 0)))
    a("s_lshl_b32 s%d, s%d, 12" % (sA, sW)); a("s_add_u32 s%d, s%d, s%d" % (sOV, sOV, sA))
    a("s_sub_u32 s%d, s%d, %d" % (sOK, sOV, 32 * 256))
    a("s_and_b32 s%d, s%d, 0x1ffff" % (sOV, sOV)); a("s_and_b32 s%d, s%d, 0x1ffff" % (sOK, sOK))
    a("s_mov_b32 s%d, 0x%x" % (sBIG, f2u(2.0 ** 30))); a("s_mov_b32 s%d, 0" % sSPIN)
    LATE = opts.get("late", 0)
    if not LATE: g.emit(late); g.emit(lates)
    if opts.get("tlb", 0):
        e("v_lshlrev_b32 v83, 14, v%d" % vL128)
        e("v_mov_b32 v84, 0")
        e("s_cmp_eq_u32 s%d, 1" % sW); e("s_cbranch_scc1 L_t1")
        e("s_cmp_eq_u32 s%d, 2" % sW); e("s_cbranch_scc1 L_t2")
        e("s_cmp_eq_u32 s%d, 3" % sW); e("s_cbranch_scc1 L_t3")
        e("buffer_load_dword v85, v83, %s, 0 offen" % sr(SWQ))
        e("buffer_load_dword v85, v84, %s, 0 offen" % sr(SB1))
        e("s_branch L_t4")
        g.lab("L_t1")
        e("buffer_load_dword v85, v84, %s, 0 offen" % sr(SK))
        e("buffer_load_dword v85, v84, %s, 0 offen" % sr(SV))
        e("buffer_load_dword v85, v84, %s, 0 offen" % sr(SB2))
        e("s_branch L_t4")
        g.lab("L_t2")
        e("buffer_load_dword v85, v84, %s, 0 offen" % sr(SWO))
        e("buffer_load_dword v85, v84, %s, 0 offen" % sr(SW2))
        e("buffer_load_dword v85, v84, %s, 0 offen" % sr(SOUT))
        e("s_branch L_t4")
        g.lab("L_t3")
        e("buffer_load_dword v85, v83, %s, 0 offen sc1" % sr(SWS))
        e("global_load_dword v85, v84, s[%d:%d] sc1" % (sDBG, sDBG + 1))
        g.lab("L_t4")
        g.vm += ["tl", "tl"]
    e("s_or_b32 s%d, s2, s%d" % (sA, sW))
    e("s_cmp_lg_u32 s%d, 0" % sA)
    e("s_cbranch_scc0 L_mktag")
    g.lab("L_notag")
    ONE, OLO, OHI = 86, 87, 88
    SUM = [90, 91, 92, 93]; SQ = [94, 95, 96, 97]
    e("v_mov_b32 v%d, 0x3f803f80" % ONE); e("v_mov_b32 v%d, 0x3f80" % OLO); e("v_mov_b32 v%d, 0x3f800000" % OHI)
    for x in SUM + SQ: e("v_mov_b32 v%d, 0" % x)
    e("s_mov_b32 s%d, 0x%x" % (sC, f2u(1.0 / 512)))
    e("s_mov_b32 s%d, 0x%x" % (sD, f2u(1e-5)))
    NEGM = [98, 99]
    dq = []
    for n in range(5):
        a_ = adma(n)
        k = [i for i, x in enumerate(a_) if isinstance(x, tuple)][0]
        dq += [a_[:k + 1]] + [[x] for x in a_[k + 1:]]
    stamp(True)
    for rg in range(2):
        for i in range(8 * rg, 8 * rg + 8):
            g.emit(("wvm", "x%d" % i))
            for d in range(4):
                x = XR + 4 * i + d
                e("v_dot2c_f32_bf16 v%d, v%d, v%d" % (SUM[2 * rg + d % 2], x, ONE))
                e("v_dot2c_f32_bf16 v%d, v%d, v%d" % (SQ[2 * rg + d % 2], x, x))
            if dq: g.emit(dq.pop(0))
        stamp(True)
        m, q = SUM[2 * rg], SQ[2 * rg]
        e("s_nop 1")
        e("v_add_f32 v%d, v%d, v%d" % (m, m, m + 1))
        e("v_add_f32 v%d, v%d, v%d" % (q, q, q + 1))
        for pat in ("quad_perm:[1,0,3,2]", "quad_perm:[2,3,0,1]", "row_half_mirror"):
            e("s_nop 0")
            for x in (m, q): e("v_add_f32_dpp v%d, v%d, v%d %s row_mask:0xf bank_mask:0xf" % (x, x, x, pat))
        e("v_mul_f32 v%d, s%d, v%d" % (m, sC, m))
        e("v_cvt_pk_bf16_f32 v100, v%d, v%d" % (m, m))
        e("v_and_b32 v100, 0xffff0000, v100")
        e("v_xor_b32 v%d, 0x80000000, v100" % NEGM[rg])
        for i in range(8 * rg, 8 * rg + 8):
            cb = i % 8
            for d in range(4):
                x = XR + 4 * i + d
                e("v_dot2_f32_bf16 v%d, v%d, v%d, v%d" % (102 + 2 * d, x, OLO, NEGM[rg]))
                e("v_dot2_f32_bf16 v%d, v%d, v%d, v%d" % (103 + 2 * d, x, OHI, NEGM[rg]))
            for d in range(4):
                e("v_cvt_pk_bf16_f32 v%d, v%d, v%d" % (XR + 4 * i + d, 102 + 2 * d, 103 + 2 * d))
            e("ds_write_b128 v%d, %s offset:%d" % (vXW, vr(XR + 4 * i), rg * 8 * XROW + cb * 128))
            if rg and dq: g.emit(dq.pop(0))
        stamp(True)
    while dq: g.emit(dq.pop(0))
    for rg in range(2):
        m, q = SUM[2 * rg], SQ[2 * rg]
        e("v_mul_f32 v%d, s%d, v%d" % (q, sC, q))
        e("v_fma_f32 v%d, -v%d, v%d, v%d" % (q, m, m, q))
        e("v_max_f32 v%d, 0, v%d" % (q, q))
    e("v_cvt_pk_bf16_f32 v100, v%d, v%d" % (SQ[0], SQ[2]))
    e("v_lshlrev_b32 v101, 16, v100"); e("v_and_b32 v100, 0xffff0000, v100")
    e("v_add_f32 v101, s%d, v101" % sD); e("v_add_f32 v100, s%d, v100" % sD)
    e("v_cvt_pk_bf16_f32 v100, v101, v100")
    e("v_lshlrev_b32 v101, 16, v100"); e("v_and_b32 v100, 0xffff0000, v100")
    e("v_sqrt_f32 v101, v101"); e("v_sqrt_f32 v100, v100"); e("s_nop 0")
    e("v_cvt_pk_bf16_f32 v100, v101, v100")
    e("v_lshlrev_b32 v101, 16, v100"); e("v_and_b32 v100, 0xffff0000, v100")
    e("v_rcp_f32 v101, v101"); e("v_rcp_f32 v100, v100"); e("s_nop 0")
    e("ds_write_b32 v70, v101 offset:1024")
    e("ds_write_b32 v70, v100 offset:%d" % (1024 + 8 * XROW))
    g.emit(("wvm", "m0"))
    def areads(n, slot, tag):
        base = AF + 16 * (n % 2)
        return [("lg", "ds_read_b64_tr_b16 %s, v%d offset:%d" % (vr(base + 4 * mt + 2 * a, 2), vTR[mt % 2], slot + a * 512 + (mt // 2) * 256), tag)
                for mt in range(4) for a in range(2)]
    def breads(dst, addr, off, tag):
        return [("lg", "ds_read_b128 %s, v%d offset:%d" % (dst(q4), addr[q4 // 2], off + (q4 % 2) * RS), tag) for q4 in range(4)]
    def acc16(accb, mt, q4): return vr(accb + 16 * (2 * (mt // 2) + q4 // 2) + 8 * (mt % 2) + 4 * (q4 % 2))
    def macro_mf(n, accb, bsrc, first):
        base = AF + 16 * (n % 2)
        return [mfma16(acc16(accb, mt, q4), vr(base + 4 * mt), bsrc(q4), "0" if first else acc16(accb, mt, q4)) for mt in range(4) for q4 in range(4)]
    def kdma(m0, tag):
        it = []
        for b in range(4):
            it += [m0(b), ("vm", "buffer_load_dwordx4 v%d, %s, s%d offen offset:%d lds" % (vKD, sr(SK), sOK, b * 1024), tag)]
        return it + ["s_add_u32 s%d, s%d, 0x4000" % (sOK, sOK), "s_and_b32 s%d, s%d, 0x1ffff" % (sOK, sOK)]
    def vdma(m0, tag):
        return [m0] + [("vm", "buffer_load_dwordx4 v%d, %s, s%d offen offset:%d lds" % (vVD, sr(SV), sOV, b * 1024), tag) for b in range(4)] + \
               ["s_add_u32 s%d, s%d, 0x4000" % (sOV, sOV), "s_and_b32 s%d, s%d, 0x1ffff" % (sOV, sOV)]
    def kdma_s(slot, tag): return kdma(lambda b: "s_add_u32 m0, s%d, %d" % (sREG, slot + 64 * b), tag)
    def vdma_s(slot, tag): return vdma("s_add_u32 m0, s%d, %d" % (sREG, slot), tag)
    def bupd(regs, step=256): return ["s_add_u32 s%d, s%d, %d" % (sBO, sBO, step), "s_and_b32 s%d, s%d, 0x3ff" % (sBO, sBO)] + ["v_add_u32 v%d, s%d, v%d" % (regs[k], sBO, vB[k]) for k in range(2)]
    DG = [3, 7, 11, 14]
    def res_dma(sc, g0, sign):
        for k in DG: sc.reserve(g0 + k, 8 * sign)
    def place_dma(sc, dm, g0):
        res_dma(sc, g0, -1)
        k = 0
        for it in dm:
            if isinstance(it, tuple): sc.put("dma", it, g0 + DG[k], g0 + DG[k], force=True); k += 1
            elif k < 4:
                sc.reserve(g0 + DG[k], 8); sc.put("dma", it, max(g0 - 1, 0), g0 + DG[k] - 1); sc.reserve(g0 + DG[k], -8)
            else: sc.put("dma", it, g0, min(g0 + GP + 1, sc.n - 1))
    def place_reads(sc, rd, b, g0):
        if b:
            sc.maxlg = 2
            sc.spread("rd", rd[:2] + b[:2] + rd[2:4] + b[2:], g0, g0 + 11, asap=True)
            sc.maxlg = 1
            sc.spread("rd", rd[4:], g0, g0 + 11, asap=True)
        else: sc.spread("rd", rd, g0, g0 + 11, asap=True)
    def swaps(b): return ["v_permlane16_swap_b32 v%d, v%d" % (b + k, b + 2 + k) for k in range(2)]

    g.emit(areads(0, aslot(0), "r0"))
    e("s_waitcnt lgkmcnt(8)")
    stamp(True)
    e("s_barrier")
    stamp()
    aB = lambda n: (lambda q4: ar(16 * (n % 16) + 4 * q4))
    g.emit(breads(aB(0), vBR, 0, "r0"))
    for q4 in range(4): g.emit(("lg", "ds_read_b32 v%d, v%d offset:%d" % (vRS[q4], 79 if q4 < 2 else 81, 1024 + (q4 % 2) * RS), "rs"))
    if RG == 1: g.emit(bupd(vBR, 64))
    g.emit(("wboth", "m1", "r0"))
    mf = []
    for n in range(48): mf += macro_mf(n, [128, 0, 64][n // 16], aB(n), n % 16 == 0)
    sc = Sched(g, mf)
    for n in range(47): res_dma(sc, GP * n, 1)
    for n in range(47):
        g0 = GP * n
        wv = ["m%d" % (n + 2)] if n + 2 < 48 else None
        sc.put("w", ("wboth", wv, "r%d" % (n + 1)) if wv else ("wlg", "r%d" % (n + 1)), g0 + GP - 1, g0 + GP - 1, force=True)
        b = breads(aB(n + 1), vBR, 64 * ((n + 1) % RG), "r%d" % (n + 1)) if n + 1 < 16 else None
        place_reads(sc, areads(n + 1, aslot(n + 1), "r%d" % (n + 1)), b, g0)
        if (n + 2) % RG == 0 and n + 2 < 16: sc.spread("rd", bupd(vBR, 64 * RG), g0 + 6, g0 + GP - 1, asap=True)
    for n in range(47):
        place_dma(sc, adma(n + 5) if n + 5 < 48 else [kdma_s(K0S, "k0"), kdma_s(KA, "k1"), vdma_s(VA, "v0"), kdma_s(KB, "k2")][n - 43], GP * n)
    XC = opts.get("xcap", 8)
    if XC:
        for i in range(GP * 16, GP * 48, XC): sc.caps[i] += 4
    if LATE:
        for i in range(0, GP * 16, 2): sc.caps[i] += 4
        sc.spread("l", late, 0, GP * 10, asap=True)
        sc.spread("ls", lates, 0, GP * 10, asap=True)
    BIAS, BU = 112, 84
    sc.spread("x", [("vm", "buffer_load_dwordx2 %s, v82, %s, s%d offen offset:%d" % (vr(BIAS + 2 * mt, 2), sr(SB1), sOH, 32 * mt), "b1") for mt in range(4)], GP * 11, GP * 13, slack=3)
    hep = [("wvm", "b1")]
    for k in range(8):
        hep += ["v_lshlrev_b32 v%d, 16, v%d" % (BU + 2 * k, BIAS + k), "v_and_b32 v%d, 0xffff0000, v%d" % (BU + 2 * k + 1, BIAS + k)]
    sc.spread("x", hep, GP * 15 + 8, GP * 17, asap=True)
    def hdst(ft, qt, jj): return 160 + 16 * qt + 8 * jj + (4 if ft == 0 else 0)
    hep = []
    for ft in (1, 0):
        for qt in range(2):
            for jj in range(2):
                b = 128 + 16 * (2 * ft + qt) + 8 * jj
                hep += ["v_fma_f32 v%d, v%d, v%d, v%d" % (b + k, b + k, vRS[2 * qt + k // 4], BU + 4 * (2 * ft + jj) + k % 4) for k in range(8)]
    sc.spread("x", hep, GP * 16 + 8, GP * 32 - 4, asap=True)
    hep = ["s_mov_b32 s%d, 0x%x" % (sD, f2u(math.log2(math.e) / math.sqrt(128.0)))] + ["v_mul_f32 v%d, s%d, v%d" % (vRS[k], sD, vRS[k]) for k in range(4)]
    pend = []
    for ft in (1, 0):
        for qt in range(2):
            for jj in range(2):
                b = 128 + 16 * (2 * ft + qt) + 8 * jj
                hep += ["v_max_f32 v%d, 0, v%d" % (b + k, b + k) for k in range(8)] + pend
                hep += ["v_mul_f32 v%d, v%d, v%d" % (b + k, b + k, b + k) for k in range(8)]
                hep += ["v_cvt_pk_bf16_f32 v%d, v%d, v%d" % (hdst(ft, qt, jj) + k, b + 2 * k, b + 2 * k + 1) for k in range(4)]
                pend = swaps(hdst(ft, qt, jj))
    hep += ["s_nop 1"] + pend
    sc.spread("x", hep, GP * 16, GP * 48 - 1, asap=True)
    def qpack(half):
        it = []; pend = []
        for T in range(4 * half, 4 * half + 4):
            qt = T % 2
            for jj in range(2):
                b = 16 * T + 8 * jj; d = 8 * T + 4 * jj
                it += ["v_mul_f32 v%d, v%d, v%d" % (b + k, b + k, vRS[2 * qt + k // 4]) for k in range(8)] + pend
                it += ["v_cvt_pk_bf16_f32 v%d, v%d, v%d" % (d + k, b + 2 * k, b + 2 * k + 1) for k in range(4)]
                pend = swaps(d)
        return it + ["s_nop 1"] + pend
    vZ = vW1[0]; vFO = vW1[1]; vFL = 202; vP16 = 202
    sc.spread("y", ["v_mov_b32 v%d, 0" % vZ, ("vm", "global_load_dwordx2 %s, v%d, s[%d:%d] sc1" % (vr(vTAG, 2), vZ, sDBG, sDBG + 1), "tag")], GP * 20, GP * 22, slack=3)
    su = ["s_lshl_b32 s%d, s%d, 1" % (sA, sR), "s_mul_i32 s%d, s%d, %d" % (sOH, sA, 112 * 1024),
          "s_lshl_b32 s%d, s%d, 12" % (sA, sU), "s_add_u32 s%d, s%d, s%d" % (sOH, sOH, sA), "s_add_u32 s%d, s%d, s%d" % (sOH, sOH, sINV),
          "s_add_u32 s%d, s%d, %d" % (sOH2, sOH, 112 * 1024),
          "s_add_u32 s%d, s%d, %d" % (sKD, sREG, KA), "s_add_u32 s%d, s%d, %d" % (sVD, sREG, VB),
          "s_lshl_b32 s%d, s%d, 1" % (sA, sREG), "s_add_u32 s%d, s%d, %d" % (sKSUM, sA, KA + KB), "s_add_u32 s%d, s%d, %d" % (sVSUM, sA, VA + VB),
          "s_mov_b32 s%d, 0x%x" % (sKR, (KA - KB) & 0xffffffff), "s_mov_b32 s%d, 0x%x" % (sVR, (VB - VA) & 0xffffffff),
          "s_mov_b32 s%d, 0" % sCNT,
          "s_lshl_b32 s%d, s%d, 2" % (sA, sP), "s_add_u32 s%d, s%d, s%d" % (sA, sA, sW), "s_lshl_b32 s%d, s%d, %d" % (sOPF, sA, 12 + lg),
          "s_mul_i32 s%d, s%d, %d" % (sOW2, sW, 448 * 1024), "s_lshl_b32 s%d, s%d, 7" % (sA, sJ), "s_add_u32 s%d, s%d, s%d" % (sOW2, sOW2, sA),
          "s_lshl_b32 s%d, s%d, 8" % (sOS, sR), "s_lshl_b32 s%d, s%d, 5" % (sA, sG), "s_add_u32 s%d, s%d, s%d" % (sOS, sOS, sA),
          "s_lshl_b32 s%d, s%d, 3" % (sA, sW), "s_add_u32 s%d, s%d, s%d" % (sOS, sOS, sA), "s_add_u32 s%d, s%d, 0x%x" % (sOS, sOS, HF_OFF),
          "s_lshl_b32 s%d, s%d, 8" % (sPOLL, sRC), "s_lshl_b32 s%d, s%d, 6" % (sA, sW), "s_add_u32 s%d, s%d, s%d" % (sPOLL, sPOLL, sA),
          "s_add_u32 s%d, s%d, 0x%x" % (sPOLL, sPOLL, HF_OFF),
          "s_lshl_b32 s%d, s2, 2" % sC, "s_add_u32 s%d, s%d, s%d" % (sC, sC, sW), "s_lshl_b32 s%d, s%d, 11" % (sC, sC),
          "v_and_b32 v%d, 0x70, v%d" % (vFO, vLANE16), "v_lshrrev_b32 v%d, 1, v%d" % (vFO, vFO), "v_and_b32 v%d, 0x780, v%d" % (vP16, vL128)]
    q0p = qpack(0)
    sc.spread("x", q0p, GP * 32 + 8, GP * 48 - 1, asap=True)
    sc.spread("y", su, GP * 24, GP * 48 - 1, asap=True)
    ov = sc.emit({GP * 16 - 1: stamp, GP * 32 - 1: stamp})
    if opts.get("v"): print("stream A overflow", ov, "x end", sc.pos["x"][0] / GP, "y end", sc.pos["y"][0] / GP, sc.load[:48], sc.load[GP * 20:GP * 22], sc.load[-32:])
    stamp()
    def QF(ds, qt): return vr(8 * (2 * (ds // 2) + qt) + 4 * (ds % 2))
    KF, VF = 128, 160
    FA, FB = 232, [240, 248]
    vDUM = 231
    MX = [196, 198]
    def kreads(u, slot, dst, tag):
        return [("lg", "ds_read_b128 %s, v%d offset:%d" % (ar(dst + 4 * s), vKR[u][s % 2], slot + (s // 2) * 64), tag) for s in range(8)]
    def vreads(u, dst, tag, order=None):
        order = order or [(ks, dt) for ks in range(2) for dt in range(4)]
        return [("lg", "ds_read_b64_tr_b16 %s, v%d offset:%d" % (ar(dst + 4 * (4 * ks + dt) + 2 * a, 2), vVR[u], ks * RS + a * 1024 + dt * 256), tag)
                for (ks, dt) in order for a in range(2)]
    def S(p, qt): return (64 if p else 128) + 16 * qt
    def P(p, qt, ks): return 96 + 16 * p + 8 * qt + 4 * ks
    def NM(qt): return 160 + 16 * qt
    def qk(p, kf, first_c):
        mf = []
        for s in range(8):
            for qt in range(2):
                d = vr(S(p, qt), 16)
                mf.append(mfma(d, ar(kf + 4 * s), QF(s, qt), d if s else first_c(qt)))
        return mf
    def pv(p, vf, order=None, zero=False):
        order = order or [(ks, dt) for ks in range(2) for dt in range(4)]
        mf = []
        for (ks, dt) in order:
            for qt in range(2):
                d = ar(16 * (2 * dt + qt), 16)
                mf.append(mfma(d, ar(vf + 4 * (4 * ks + dt)), vr(P(p, qt, ks)), "0" if (zero and ks == 0) else d))
        return mf
    def fstep(fa, fb):
        return [mfma(ar(192 + 16 * (2 * t + qt), 16), vr(fa + 4 * t), vr(fb + 4 * qt), ar(192 + 16 * (2 * t + qt), 16)) for t in range(2) for qt in range(2)]
    def freads(k, fa, tag):
        return [("lg", "ds_read_b64_tr_b16 %s, v%d offset:%d" % (vr(fa + 4 * t + 2 * a, 2), vTRN, 2048 * k + a * 512 + t * 256), tag) for t in range(2) for a in range(2)]
    def w2dma(k, tag):
        return ["s_add_u32 m0, s%d, %d" % (sREG, 2048 * k)] + \
               [("vm", "buffer_load_dwordx4 v%d, %s, s%d offen offset:%d lds" % (vWO[b], sr(SW2), sOW2, b * 1024), tag) for b in range(2)] + \
               ["s_add_u32 s%d, s%d, 0x4000" % (sOW2, sOW2)]
    def hload(k, fb, tag):
        return [("vm", "buffer_load_dwordx4 %s, v%d, %s, s%d offen offset:%d sc1" % (vr(fb + 4 * qt), vLANE16, sr(SWS), sOH2 if qt else sOH, 1024 * k), tag) for qt in range(2)]
    def sm(p, subs=None):
        el = [(qt, k) for qt in range(2) for k in range(16)]
        T = lambda i: vT + (i % 6)
        x = list(subs[:2]) if subs else []
        for i in range(34):
            if i < 32: x.append("v_exp_f32 v%d, v%d" % (T(i), S(p, el[i][0]) + el[i][1]))
            if subs and i + 2 < 32: x.append(subs[i + 2])
            j = i - 2
            if j >= 0:
                qt, k = el[j]
                if k == 1: x.append("v_add_f32 v%d, v%d, v%d" % (vTS[qt], T(j - 1), T(j)))
                elif k > 1: x.append("v_add_f32 v%d, v%d, v%d" % (vTS[qt], vTS[qt], T(j)))
                if k % 2 == 1: x.append("v_cvt_pk_bf16_f32 v%d, v%d, v%d" % (P(p, qt, k // 8) + (k % 8) // 2, T(j - 1), T(j)))
        return x
    rare_sites = {}
    def check(p, name):
        rare_sites[name] = p
        return ["v_max_f32 v%d, v%d, v%d" % (vT + 6, vTS[0], vTS[1]),
                "v_cmp_lt_f32 vcc, s%d, v%d" % (sBIG, vT + 6),
                ["s_cbranch_vccnz L_rare%s" % name, "L_back%s:" % name],
                "v_add_f32 v%d, v%d, v%d" % (vLS[0], vLS[0], vTS[0]),
                "v_add_f32 v%d, v%d, v%d" % (vLS[1], vLS[1], vTS[1])]
    poll = "buffer_load_dwordx2 %s, v%d, %s, s%d offen sc1" % (vr(vFL, 2), vFO, sr(SWS), sPOLL)
    cmpf = "v_cmp_ne_u64 vcc, %s, %s" % (vr(vFL, 2), vr(vTAG, 2))
    g.emit(("wvm", ["k0", "k1"]))
    e("s_barrier")
    g.emit(kreads(1, K0S, KF, "kf0"))
    g.emit(kreads(0, KA, VF, "kf1"))
    qp = qpack(1)
    g.emit(qp[:30])
    g.emit(("wlg", "kf0"))
    sc = Sched(g, qk(0, KF, lambda qt: "0"))
    hst = [("vm", "buffer_store_dwordx4 %s, v%d, %s, s%d offen offset:%d sc1" % (vr(hdst(ft, qt, jj)), vLANE16, sr(SWS), [sOH, sOH2][qt], (2 * ft + jj) * 1024), "hst")
           for ft in range(2) for jj in range(2) for qt in range(2)]
    sc.spread("h", hst, 0, 11)
    sc.spread("h", [("vm", "buffer_load_dword v%d, v%d, %s, s%d offen" % (vP16, vP16, sr(SW2), sC), "pf")], 13, 15)
    sc.level("q", qp[30:] + ["s_nop 1"], 0, 7)
    zf = ["v_accvgpr_write_b32 a%d, 0" % (192 + i) for i in range(64)]
    sc.spread("z", zf[:36], 8, 15, asap=True)
    sc.emit()
    g.emit(zf[36:48])
    for qt in range(2):
        s0 = S(0, qt); t = MX[qt]
        e("v_max3_f32 v%d, v%d, v%d, v%d" % (t, s0, s0 + 1, s0 + 2))
        for k in range(3, 15, 2): e("v_max3_f32 v%d, v%d, v%d, v%d" % (t, t, s0 + k, s0 + k + 1))
        e("v_max_f32 v%d, v%d, v%d" % (t, t, s0 + 15))
        e("v_mov_b32 v%d, v%d" % (t + 1, t))
    g.emit(zf[48:50])
    for qt in range(2): e("v_permlane32_swap_b32 v%d, v%d" % (MX[qt], MX[qt] + 1))
    g.emit(zf[50:52])
    for qt in range(2): e("v_max_f32 v%d, v%d, v%d" % (MX[qt], MX[qt], MX[qt] + 1))
    for qt in range(2):
        for k in range(16): e("v_sub_f32 v%d, 0, v%d" % (NM(qt) + k, MX[qt]))
    nmc = lambda qt: vr(NM(qt), 16)
    subs = ["v_sub_f32 v%d, v%d, v%d" % (S(0, qt) + k, S(0, qt) + k, MX[qt]) for qt in range(2) for k in range(16)]
    g.emit(zf[52:53])
    g.emit(("wlg", "kf1"))
    sc = Sched(g, qk(1, VF, nmc))
    sc.spread("k", kreads(1, KA, KF, "kf"), 0, 7)
    sc.spread("k", ["v_add_u32 v%d, %d, v%d" % (vKR[u][par], KB, vKR[u][par]) for u in range(2) for par in range(2)], 8, 12)
    sc.put("b", [("wboth", ["k2", "v0"], "kf"), "s_barrier"], 13, 13, force=True)
    sc.level("s", sm(0, subs) + ["v_mov_b32 v%d, v%d" % (vLS[q], vTS[q]) for q in range(2)], 0, 15)
    sc.emit()
    e("s_nop 3")
    stamp()
    fl = ["v_cmp_eq_u32 vcc, 0, v%d" % vTAG, "s_cbranch_vccnz L_tagwait", "L_tagok:", ("wvm", "hst"), "s_mov_b64 exec, 1",
          ("vm", "buffer_store_dwordx2 %s, v%d, %s, s%d offen sc1" % (vr(vTAG, 2), vZ, sr(SWS), sOS), "hflag"), "s_mov_b64 exec, -1"]

    def attn_iter(withF, name):
        f = 4 if withF else 0
        F = [0, 16 + f, 32 + 2 * f, 48 + 3 * f]
        QK = [f, 32 + 3 * f]; PVs = [16 + 2 * f, 48 + 4 * f]
        n = 64 + 4 * f
        fs = (lambda k: fstep(FA, FB[k % 2])) if withF else (lambda k: [])
        sc = Sched(g, fs(0) + qk(0, KF, nmc) + fs(1) + pv(0, VF, zero=not withF) + fs(2) + qk(1, KF, nmc) + fs(3) + pv(1, VF), cap=24 if withF else 28)
        BG = n - 5
        sc.reserve(BG, 12)
        if withF: sc.reserve(n - 1, 8)
        v0 = vreads(0, VF, "vf0")
        sc.spread("v", v0[8:] if withF else v0, 0, PVs[0] - 5)
        sc.put("w", ("wlg", "vf0"), PVs[0] - 1, PVs[0] - 1, force=True)
        sc.spread("k", kreads(0, 0, KF, "kf0"), QK[0] + 16, QK[0] + 24 + f)
        sc.put("w", ("wlg", "kf0"), QK[1] - 1, QK[1] - 1, force=True)
        sc.spread("v", vreads(1, VF, "vf1"), PVs[0] + 16, PVs[1] - 5)
        sc.put("w", ("wlg", "vf1"), PVs[1] - 1, PVs[1] - 1, force=True)
        sc.spread("k", kreads(1, 0, KF, "kf1"), QK[1] + 16, QK[1] + 23)
        kd = kdma(lambda b: "s_add_u32 m0, s%d, %d" % (sKD, 64 * b), "kl") + ["s_sub_u32 s%d, s%d, s%d" % (sKD, sKSUM, sKD)]
        vd = vdma("s_mov_b32 m0, s%d" % sVD, "vl") + ["s_sub_u32 s%d, s%d, s%d" % (sVD, sVSUM, sVD)]
        if withF:
            for k in range(1, 4):
                sc.spread("fa", freads(k, FA, "fa%d" % k), F[k] - 11, F[k] - 6)
                sc.put("fw", ("wboth", ["h%d" % k if k > 1 else "p_h1", "p_w%d" % (k + 1) if k < 3 else "w0"], "fa%d" % k), F[k] - 1, F[k] - 1, force=True)
            sc.spread("h", hload(2, FB[0], "h2"), F[0] + 4, F[0] + 5)
            sc.spread("h", hload(3, FB[1], "h3") + [["s_add_u32 s%d, s%d, 4096" % (sOH, sOH), "s_add_u32 s%d, s%d, 4096" % (sOH2, sOH2)]], F[1] + 4, F[1] + 6, slack=2)
            sc.spread("h", hload(0, FB[0], "h0"), F[2] + 4, F[2] + 5)
            sc.spread("h", hload(1, FB[1], "h1"), F[3] + 4, F[3] + 5)
            sc.spread("d", w2dma(0, "w0"), 5, 8)
            sc.spread("d", kd, 8, F[1])
            sc.spread("d", w2dma(1, "w1"), F[1] + 5, F[1] + 8)
            sc.spread("d", vd, F[1] + 8, F[1] + 15)
            sc.spread("d", w2dma(2, "w2"), F[2] + 5, F[2] + 8)
            sc.spread("d", [("vm", "buffer_load_dword v%d, v%d, %s, s%d offen" % (vDUM, vL128, sr(SWO), sOPF), "pf2"), "s_add_u32 s%d, s%d, %d" % (sOPF, sOPF, 1024 * GG)], F[2] + 8, F[2] + 10)
            if opts.get("pf3", 0):
                sc.spread("d", [("vm", "buffer_load_dword v%d, v203, %s, s%d offen sc1" % (vDUM, sr(SWS), sF), "pf3"), "s_add_u32 s%d, s%d, 2048" % (sF, sF)], F[2] + 10, F[2] + 13)
            sc.spread("d", w2dma(3, "w3"), F[3] + 5, F[3] + 8)
            sc.put("c", "s_add_u32 s%d, s%d, 1" % (sCNT, sCNT), F[2] + 8, F[3])
        else:
            sc.spread("d", kd + vd, 2, 22)
            sc.spread("h", [fl], opts.get("hfg", 0), opts.get("hfg", 0))
            hs = ["s_lshl_b32 s%d, s%d, 1" % (sA, sRC), "s_mul_i32 s%d, s%d, %d" % (sOH, sA, 112 * 1024), "s_mul_i32 s%d, s%d, %d" % (sA, sW, 28 * 1024),
                  "s_add_u32 s%d, s%d, s%d" % (sOH, sOH, sA), "s_add_u32 s%d, s%d, %d" % (sOH2, sOH, 112 * 1024)]
            sc.spread("h", hs, 26, 31)
            sc.spread("z", zf[53:] + ["v_and_b32 v%d, 0x%x, v%d" % (vL128, 1024 * GG - 128, vL128)], 24, 31)
            HPG = opts.get("hpg", 36)
            sc.spread("d", w2dma(0, "w0") + w2dma(1, "w1") + w2dma(2, "w2"), 23, 36)
            sc.put("h", ("vm", poll, "hpoll"), HPG, HPG + 2)
            sc.put("h", [("wvm", "hpoll"), cmpf, "s_cbranch_vccnz L_hwait", "L_hok:"], HPG + 16, HPG + 16, force=True)
            sc.spread("h", hload(0, FB[0], "h0") + hload(1, FB[1], "h1"), HPG + 17, n - 1, asap=True)
            sc.spread("d", w2dma(3, "w3"), sc.pos["h"][0], n - 1, asap=True)
            if opts.get("pf3", 0):
                sc.spread("h", ["v_and_b32 v202, 0x100, v%d" % vLANE16, "v_and_b32 v203, 0xf0, v%d" % vLANE16, "v_lshlrev_b32 v203, 3, v203", "v_lshl_or_b32 v203, v202, 8, v203",
                                "s_lshl_b32 s%d, s%d, 2" % (sF, sR), "s_add_u32 s%d, s%d, s%d" % (sF, sF, sW), "s_lshl_b32 s%d, s%d, 4" % (sF, sF),
                                "s_add_u32 s%d, s%d, s%d" % (sF, sF, sG), "s_lshl_b32 s%d, s%d, 13" % (sF, sF), "s_add_u32 s%d, s%d, 0x%x" % (sF, sF, S_OFF)], sc.pos["h"][0], n - 1, asap=True)
        sc.spread("fa", freads(0, FA, "fa0"), n - 12, n - 7)
        sc.spread("v", ["v_add_u32 v%d, s%d, v%d" % (vVR[u], sVR, vVR[u]) for u in range(2)] + ["s_sub_u32 s%d, 0, s%d" % (sVR, sVR)], PVs[1] - 4, PVs[1] + 2)
        sc.spread("k", ["v_add_u32 v%d, s%d, v%d" % (vKR[u][par], sKR, vKR[u][par]) for u in range(2) for par in range(2)] + ["s_sub_u32 s%d, 0, s%d" % (sKR, sKR)], QK[1] + 24, n - 2)
        sc.put("b", [("wboth", ["kl", "vl"], "kf1"), "s_barrier"], BG, BG, force=True)
        sc.spread("v", v0[:8], BG + 1, n - 2)
        if not withF: sc.put("fw", ("wvm", "w0"), n - 13, n - 13, force=True)
        sc.put("fw", ("wboth", ["h0", "w1"], "fa0"), n - 1, n - 1, force=True)
        if withF: sc.put("c", ["s_cmp_lt_u32 s%d, 6" % sCNT, "s_cbranch_scc1 L_attn"], n - 1, n - 1, force=True)
        for half in range(2):
            p = (1 + half) % 2
            lo = 0 if half == 0 else PVs[0] + 16
            hi = QK[1] - 1 if half == 0 else n - 2
            sc.spread("s", sm(p), lo, hi - 1, asap=True)
            for i, x in enumerate(check(p, "%s%d" % (name, half))): sc.put("s", x, QK[half] + 16, hi if i < 3 else hi + 1)
        return sc
    g.lg = []
    sc = attn_iter(False, "p")
    ov = sc.emit()
    if opts.get("v"): print("attn0 loads", sc.load, "over", ov)
    stamp()
    e(".p2align 3")
    g.lab("L_attn")
    def prev(l): return ["p_" + x for x in l]
    save = g.L
    outs = []
    seed_vm, seed_lg = prev(g.vm), list(g.lg)
    for it in range(3):
        g.L = []; g.vm = list(seed_vm); g.lg = list(seed_lg)
        n0, l0 = len(g.vm), len(g.lg)
        sc = attn_iter(True, "l")
        ov = sc.emit()
        outs.append(g.L)
        seed_vm, seed_lg = prev(g.vm[n0:]), list(g.lg[l0:])
    if opts.get("v"): print("attn loads", sc.load, "over", ov)
    merged = []
    for lines in zip(*outs):
        if len(set(lines)) == 1: merged.append(lines[0]); continue
        assert all("s_waitcnt" in x for x in lines), lines
        parts = []
        for c in ("vmcnt", "lgkmcnt"):
            v = [re.search(c + r"\((\d+)\)", x) for x in lines]
            if v[0]: parts.append("%s(%d)" % (c, min(int(m.group(1)) for m in v)))
        if opts.get("v"): print("merge", lines)
        merged.append("    s_waitcnt " + " ".join(parts))
    g.L = save + merged
    g.vm = seed_vm; g.lg = seed_lg
    stamp()
    vXO = 196; vH16 = 197; vRL = [198, 199]
    vOW = [218, 219]; vRA = [220, 221, 223]; vBR2 = [200, 203]
    OLO2, OHI2, vFL2, vZ2 = 210, 211, 212, 214
    o15 = [(ks, dt) for dt in range(4) for ks in range(2)]
    ACCA, ACCB, OP = 128, 64, 64
    mf = fstep(FA, FB[0]) + pv(0, VF) + fstep(16, FB[1]) + fstep(24, 0) + fstep(32, 8) + pv(1, KF, o15)
    M0 = len(mf)
    def bB(n):
        s = n % 16
        return (lambda q4: vr(16 * (s - 12) + 4 * q4)) if s >= 12 else (lambda q4: ar(16 * s + 4 * q4))
    for n in range(32):
        mf += macro_mf(n, ACCA if n < 16 else ACCB, (lambda q4, n=n: vr(OP + 16 * n + 4 * q4)) if n < 4 else bB(n), n % 16 == 0)
    sc = Sched(g, mf)
    MG = lambda n: M0 + GP * n
    v0 = vreads(0, VF, "v14b")
    sc.put("w", ("wlg", "vf0"), 3, 3, force=True)
    sc.spread("v", v0[8:], 0, 3)
    sc.put("w", ("wlg", "v14b"), 11, 11, force=True)
    sc.spread("h", hload(2, 0, "h26") + hload(3, 8, "h27"), 0, 5)
    sc.put("fr", ("wvm", "p_w3"), 5, 5, force=True)
    sc.spread("fr", freads(1, 16, "fa25") + freads(2, 24, "fa26") + freads(3, 32, "fa27"), 6, 14)
    sc.put("w", ("wboth", "p_h1", "fa27"), 19, 19, force=True)
    sc.put("w", ("wvm", "h27"), 23, 23, force=True)
    sc.spread("v", vreads(1, KF, "v15", o15), 12, 27)
    sc.put("w", ("wlg", "v15"), 31, 31, force=True)
    sc.spread("dma", dmaoffs(vWO, 1024)[1:], 8, 12)
    sc.spread("s", sm(1), 0, 29, asap=True)
    for i, x in enumerate(check(1, "t")): sc.put("s", x, 0, 31 if i < 3 else 33)
    lt = ["v_mov_b32 v%d, v%d" % (vRL[qt], vLS[qt]) for qt in range(2)] + ["s_lshl_b32 s%d, s%d, 8" % (sBO, sW), "s_nop 0"]
    lt += ["v_permlane32_swap_b32 v%d, v%d" % (vRL[qt], vLS[qt]) for qt in range(2)]
    lt += ["v_add_u32 v%d, s%d, v%d" % (vOW[k], sBO, vB[k]) for k in range(2)]
    lt += ["v_add_f32 v%d, v%d, v%d" % (vLS[qt], vLS[qt], vRL[qt]) for qt in range(2)]
    lt += ["v_rcp_f32 v%d, v%d" % (vRL[qt], vLS[qt]) for qt in range(2)]
    lt += bupd(vBR2)
    sc.spread("s", lt, 28, 38, asap=True)
    gl = sc.pos["s"][0]
    sc.put("fx", "s_barrier", 32, 32, force=True)
    def bdma(n):
        pre = ["s_add_u32 m0, s%d, %d" % (sREG, BSLOT[n % 5])]
        if n == 0: pre += ["s_mul_i32 s%d, s%d, %d" % (sOM, sW, 128 * 1024 + 256)]
        else:
            pre += ["s_add_u32 s%d, s%d, %d" % (sOM, sOM, 32 * 1024 + (128 if n == 16 else 0))]
            if n % 4 == 0: pre += ["s_and_b32 s%d, s%d, 0x7ffff" % (sOM, sOM)]
        return pre + [("vm", "buffer_load_dwordx4 v%d, %s, s%d offen offset:%d lds" % (vWO[b], sr(SWO), sOM, b * 1024), "m%d" % n) for b in range(4)]
    sc.spread("dma", bdma(0) + bdma(1) + bdma(2) + bdma(3), 14, 40, slack=3)
    sc.spread("dma", bdma(4), 41, 46, slack=1)
    sc.put("rd", ("wvm", "m0"), M0 - 7, M0 - 7, force=True)
    sc.spread("rd", areads(0, BSLOT[0], "r0"), M0 - 6, M0 - 3)
    sc.put("w", ("wboth", "m1", "r0"), M0 - 1, M0 - 1, force=True)
    TC = MG(3) + 3
    for n in range(27): res_dma(sc, MG(n), 1)
    for n in range(31):
        g0 = MG(n)
        wv = "m%d" % (n + 2) if n + 2 < 32 else None
        sc.put("w", ("wboth", wv, "r%d" % (n + 1)) if wv else ("wlg", "r%d" % (n + 1)), g0 + GP - 1, g0 + GP - 1, force=True)
        b = breads(bB(n + 1), vBR2, 64 * ((n + 1) % 4), "r%d" % (n + 1)) if 4 <= n + 1 < 20 else None
        if n + 1 == 4:
            sc.maxlg = 2; sc.spread("rb", b, TC + 1, TC + 3, asap=True); sc.maxlg = 1; b = None
        place_reads(sc, areads(n + 1, BSLOT[(n + 1) % 5], "r%d" % (n + 1)), b, g0)
        if (n + 2) % 4 == 0 and 4 < n + 2 < 20: sc.spread("rd", bupd(vBR2), g0 + 6, g0 + GP - 1, asap=True)
    for n in range(27): place_dma(sc, bdma(n + 5), MG(n))
    for dt in range(4):
        cv = []
        for qt in range(2):
            for jj in range(2):
                a0 = 16 * (2 * dt + qt) + 8 * jj
                t = [96 + 8 * jj, 96 + 8 * jj, 112 + 8 * jj, 40 + 8 * jj][dt]
                o = OP + 16 * dt + 8 * qt + 4 * jj
                cv += ["v_accvgpr_read_b32 v%d, a%d" % (t + k, a0 + k) for k in range(8)]
                if qt == 1 and jj == 0: cv += pend
                cv += ["v_mul_f32 v%d, v%d, v%d" % (t + k, t + k, vRL[qt]) for k in range(8)]
                cv += ["v_cvt_pk_bf16_f32 v%d, v%d, v%d" % (o + k, t + 2 * k, t + 2 * k + 1) for k in range(4)]
            o = OP + 16 * dt + 8 * qt
            pend = ["v_permlane16_swap_b32 v%d, v%d" % (o + k, o + 4 + k) for k in range(4)]
            pend += [("lg", "ds_write_b128 v%d, %s offset:%d" % (vOW[qt], vr(o + 4 * jj), dt * 64 + jj * RS), "ow") for jj in range(2)]
        cv += pend[:4] + ["s_nop 0"]
        lo = max(gl + 1, 32 + 7) if dt == 0 else MG(dt - 1)
        sc.level("cv", cv, lo, MG(dt) - 1, side="ow")
        sc.put("ow", pend[4], MG(dt), force=True); sc.put("ow", pend[5], MG(dt) + 2, force=True)
    sc.put("ow", [("wlg", "ow"), "s_barrier"], TC, TC, force=True)
    XV, BV = 132, 140
    def scvt(ps):
        return ["v_cvt_pk_bf16_f32 v%d, v%d, v%d" % (b + k, b + 2 * k, b + 2 * k + 1) for b in range((ACCB if ps else ACCA), (ACCB if ps else ACCA) + 64, 8) for k in range(4)]
    def sst(ps):
        return [("vm", "buffer_store_dwordx4 %s, v%d, %s, s%d offen offset:%d sc1" % (vr((ACCB if ps else ACCA) + 8 * i), vLANE16, sr(SWS), sOS if i < 4 else sOS2, (i % 4) * 1024), "s%d" % ps) for i in range(8)]
    fp = scvt(0)
    fp += ["v_and_b32 v%d, 0x1f0, v%d" % (vXO, vLANE16), "v_lshlrev_b32 v%d, 6, v%d" % (vXO, vXO),
           "v_lshrrev_b32 v%d, 9, v%d" % (vH16, vLANE16), "v_lshlrev_b32 v%d, 4, v%d" % (vH16, vH16), "v_or_b32 v%d, v%d, v%d" % (vXO, vXO, vH16),
           "v_mov_b32 v%d, 0x3f80" % OLO2, "v_mov_b32 v%d, 0x3f800000" % OHI2, "v_mov_b32 v%d, 0" % vZ2, "v_add_u32 v%d, s%d, v%d" % (vRA[0], sREG, vLANE16)]
    fs_ = ["s_lshr_b32 s%d, s%d, 1" % (sA, sW), "s_lshl_b32 s%d, s%d, 6" % (sA, sA), "s_lshl_b32 s%d, s%d, 7" % (sB2O, sJ), "s_add_u32 s%d, s%d, s%d" % (sB2O, sB2O, sA),
           "s_and_b32 s%d, s%d, 1" % (sA, sW), "s_lshl_b32 s%d, s%d, 15" % (sA, sA), "s_lshl_b32 s%d, s%d, 16" % (sXO, sRC), "s_add_u32 s%d, s%d, s%d" % (sXO, sXO, sA),
           "s_add_u32 s%d, s%d, s%d" % (sXO, sXO, sB2O),
           "s_lshl_b32 s%d, s%d, 3" % (sPOLL, sRC), "s_add_u32 s%d, s%d, s%d" % (sPOLL, sPOLL, sJ), "s_lshl_b32 s%d, s%d, 16" % (sOPF, sPOLL),
           "s_lshl_b32 s%d, s%d, 7" % (sPOLL, sPOLL), "s_add_u32 s%d, s%d, 0x%x" % (sPOLL, sPOLL, F_OFF),
           "s_lshl_b32 s%d, s%d, 11" % (sA, sW), "s_add_u32 s%d, s%d, s%d" % (sOPF, sOPF, sA), "s_add_u32 s%d, s%d, 0x%x" % (sOPF, sOPF, S_OFF),
           "s_mov_b32 s%d, 0x%x" % (sD, f2u(-math.log2(math.e))),
           "s_lshl_b32 s%d, s%d, 2" % (sA, sR), "s_add_u32 s%d, s%d, s%d" % (sA, sA, sW), "s_lshl_b32 s%d, s%d, 4" % (sB_, sA), "s_lshl_b32 s%d, s%d, 5" % (sC, sA),
           "s_add_u32 s%d, s%d, s%d" % (sB_, sB_, sG), "s_lshl_b32 s%d, s%d, 13" % (sB_, sB_), "s_add_u32 s%d, s%d, 0x%x" % (sOS, sB_, S_OFF), "s_add_u32 s%d, s%d, 4096" % (sOS2, sOS),
           "s_add_u32 s%d, s%d, s%d" % (sC, sC, sG), "s_lshl_b32 s%d, s%d, 3" % (sC, sC), "s_add_u32 s%d, s%d, 0x%x" % (sC, sC, F_OFF),
           "s_lshl_b32 s%d, s%d, 12" % (sB_, sW), "s_add_u32 s%d, s%d, %d" % (sB_, sB_, BSLOT[2]), ["s_cmp_eq_u32 s%d, 3" % sW, "s_cselect_b32 s%d, %d, s%d" % (sB_, BSLOT[0], sB_)],
           "v_add_u32 v%d, s%d, v%d" % (vRA[1], sB_, vLANE16), "v_add_u32 v%d, %d, v%d" % (vRA[2], 2 * RS, vRA[1]), "s_mov_b32 s%d, 0" % sKD]
    sc.spread("fs", fs_, MG(5), MG(24), asap=True)
    sc.spread("st", fp, MG(16) + 8, MG(25), asap=True)
    SA0, SA1 = opts.get("sa0", 27), opts.get("sa1", 31)
    xl = []
    for jj in range(2):
        xl.append(("vm", "buffer_load_dwordx4 %s, v%d, %s, s%d offen offset:%d" % (vr(XV + 16 * jj), vXO, sr(SX), sXO, 32 * jj), "xf"))
        xl.append(("vm", "buffer_load_dwordx4 %s, v%d, %s, s%d offen offset:%d" % (vr(BV + 16 * jj), vH16, sr(SB2), sB2O, 32 * jj), "xf"))
    sc.spread("st", xl, MG(SA0 - 1), MG(SA0) - 1, slack=3)
    sc.spread("st", sst(0), MG(SA0), MG(SA1), slack=4)
    sc.spread("st", ["s_add_u32 s%d, s%d, 0x10000" % (sOS, sOS), "s_add_u32 s%d, s%d, 0x10000" % (sOS2, sOS2)], MG(SA1), sc.n - 1, asap=True)
    FX = [BSLOT[2], BSLOT[3], BSLOT[4], BSLOT[0]]
    for T in range(4):
        fw = [("lg", "ds_write_b128 v%d, %s offset:%d" % (vRA[0], ar(192 + 16 * T + 4 * q4), FX[T] + q4 * 1024), "fw") for q4 in range(4)]
        sc.spread("fw", fw, MG(27 + T) + 8, MG(27 + T) + 15, slack=1)
    ov = sc.emit({M0 - 1: stamp, MG(4) - 1: stamp, MG(16) - 1: stamp})
    if opts.get("v"): print("tail/B loads", sc.load[:MG(6)], "overflow", ov, "fs end", (sc.pos["fs"][0] - M0) / GP)
    stamp()
    def sflag(ps):
        return [("wvm", "s%d" % ps), "s_mov_b64 exec, 1",
                ("vm", "buffer_store_dwordx2 %s, v%d, %s, s%d offen offset:%d sc1" % (vr(vTAG, 2), vZ2, sr(SWS), sC, 128 * ps), "sflag%d" % ps), "s_mov_b64 exec, -1"]
    poll2 = "buffer_load_dwordx2 %s, v%d, %s, s%d offen sc1" % (vr(vFL2, 2), vFO, sr(SWS), sPOLL)
    SV_, SS, FBU, XU = 128, 16, 64, 80
    sDONE, sNEW = sKD, sVD
    cv1 = scvt(1); st1 = sst(1)
    for i in (0, 2, 1, 3, 4, 6, 5, 7):
        g.emit(cv1[4 * i:4 * i + 4]); g.emit(st1[i])
    e("s_waitcnt lgkmcnt(0)")
    e("s_barrier")
    for rho in range(4):
        for q4 in range(4):
            e("ds_read_b128 %s, v%d offset:%d" % (vr(16 * rho + 4 * q4), vRA[1 + rho // 2], (rho % 2) * RS + q4 * 1024))
    g.emit(("wvm", "xf"))
    for k in range(8):
        src = BV + 16 * (k // 4) + k % 4
        e("v_lshlrev_b32 v%d, 16, v%d" % (FBU + 2 * k, src)); e("v_and_b32 v%d, 0xffff0000, v%d" % (FBU + 1 + 2 * k, src))
    for k in range(8):
        src = XV + 16 * (k // 4) + k % 4
        e("v_lshlrev_b32 v%d, 16, v%d" % (XU + 2 * k, src)); e("v_and_b32 v%d, 0xffff0000, v%d" % (XU + 1 + 2 * k, src))
    g.emit(sflag(0))
    for rho in range(4):
        e("s_waitcnt lgkmcnt(%d)" % (12 - 4 * rho))
        for k in range(16): e("v_add_f32 v%d, v%d, v%d" % (FBU + k, FBU + k, 16 * rho + k))
    stamp(True)
    g.emit(sflag(1))
    stamp(True)
    e(poll2); g.vm.append("spoll0")
    for k in range(16): e("v_mul_f32 v%d, s%d, v%d" % (k, sD, FBU + k))
    for k in range(16): e("v_exp_f32 v%d, v%d" % (k, k))
    for k in range(16): e("v_add_f32 v%d, 1.0, v%d" % (k, k))
    for k in range(16): e("v_rcp_f32 v%d, v%d" % (k, k))
    for k in range(16): e("v_mul_f32 v%d, v%d, v%d" % (k, k, FBU + k))
    g.emit(("wvm", "spoll0"))
    e("s_branch L_pchk")
    g.lab("L_poll")
    e("s_sleep 2")
    e(poll2)
    e("s_add_u32 s%d, s%d, 1" % (sSPIN, sSPIN))
    e("s_cmp_gt_u32 s%d, 0x%x" % (sSPIN, 1 << 20))
    e("s_cbranch_scc1 L_pdone")
    e("s_waitcnt vmcnt(0)")
    g.lab("L_pchk")
    e("v_cmp_eq_u64 vcc, %s, %s" % (vr(vFL2, 2), vr(vTAG, 2)))
    e("s_nop 1")
    e("s_andn2_b32 s%d, vcc_lo, s%d" % (sNEW, sDONE))
    e("s_and_b32 s%d, s%d, 0xff" % (sNEW, sNEW))
    e("s_cbranch_scc0 L_poll")
    e("s_or_b32 s%d, s%d, s%d" % (sDONE, sDONE, sNEW))
    for gp in range(8):
        e("s_bitcmp1_b32 s%d, %d" % (sNEW, gp))
        e("s_cbranch_scc0 L_sk%d" % gp)
        e("s_add_u32 s%d, s%d, %d" % (sA, sOPF, 8192 * gp))
        for jj in range(2):
            e("buffer_load_dwordx4 %s, v%d, %s, s%d offen offset:%d sc1" % (vr(SV_ + 8 * gp + 4 * jj), vLANE16, sr(SWS), sA, jj * 1024))
        g.lab("L_sk%d" % gp)
    e("s_cmp_lg_u32 s%d, 0xff" % sDONE)
    e("s_cbranch_scc1 L_poll")
    g.lab("L_pdone")
    stamp(True)
    e("s_waitcnt vmcnt(0)")
    for gp in range(8):
        for k in range(8):
            src = SV_ + 8 * gp + k
            if gp == 0:
                e("v_lshlrev_b32 v%d, 16, v%d" % (SS + 2 * k, src)); e("v_and_b32 v%d, 0xffff0000, v%d" % (SS + 1 + 2 * k, src))
            else:
                e("v_dot2c_f32_bf16 v%d, v%d, v%d" % (SS + 2 * k, src, OLO2)); e("v_dot2c_f32_bf16 v%d, v%d, v%d" % (SS + 1 + 2 * k, src, OHI2))
    stamp(True)
    for jj in range(2):
        for k in range(4): e("v_permlane16_swap_b32 v%d, v%d" % (SS + 8 * jj + k, SS + 8 * jj + 4 + k))
    e("s_nop 0")
    for k in range(16): e("v_fma_f32 v%d, v%d, v%d, v%d" % (k, k, SS + k, XU + k))
    for k in range(8): e("v_cvt_pk_bf16_f32 v%d, v%d, v%d" % (48 + k, 2 * k, 2 * k + 1))
    for jj in range(2):
        e("buffer_store_dwordx4 %s, v%d, %s, s%d offen offset:%d" % (vr(48 + 4 * jj), vXO, sr(SOUT), sXO, 32 * jj))
    if stamps:
        e("s_waitcnt vmcnt(0)")
        stamp()
        e("s_memrealtime s[90:91]"); e("s_waitcnt lgkmcnt(0)"); e("v_writelane_b32 v%d, s90, 63" % vST)
        e("s_lshl_b32 s%d, s2, 2" % sA)
        e("s_add_u32 s%d, s%d, s%d" % (sA, sA, sW))
        e("s_lshl_b32 s%d, s%d, 8" % (sA, sA))
        e("s_add_u32 s%d, s%d, 0x%x" % (sA, sA, F_OFF + 0x20000))
        e("v_lshrrev_b32 v0, 2, v%d" % vLANE16)
        e("buffer_store_dword v%d, v0, %s, s%d offen" % (vST, sr(SWS), sA))
    g.lab("L_end")
    e("s_endpgm")
    g.lab("L_codeend")
    g.lab("L_mktag")
    e("s_memrealtime s[%d:%d]" % (sT0, sT0 + 1))
    e("s_waitcnt lgkmcnt(0)")
    e("s_or_b32 s%d, s%d, 1" % (sA, sT0))
    e("v_mov_b32 v120, s%d" % sA)
    e("v_mov_b32 v121, s%d" % (sT0 + 1))
    e("v_mov_b32 v122, 0")
    e("global_store_dwordx2 v122, v[120:121], s[%d:%d] sc1" % (sDBG, sDBG + 1))
    e("s_branch L_notag")
    def spin(lab, back, load, cmp):
        g.lab(lab)
        e("s_sleep 1")
        for x in load: e(x)
        e("s_add_u32 s%d, s%d, 1" % (sSPIN, sSPIN))
        e("s_cmp_gt_u32 s%d, 0x%x" % (sSPIN, 1 << 20))
        e("s_cbranch_scc1 %s" % back)
        e("s_waitcnt vmcnt(0)")
        e(cmp)
        e("s_cbranch_vccnz %s" % lab)
        e("s_branch %s" % back)
    spin("L_tagwait", "L_tagok", ["global_load_dwordx2 %s, v%d, s[%d:%d] sc1" % (vr(vTAG, 2), vZ, sDBG, sDBG + 1)], "v_cmp_eq_u32 vcc, 0, v%d" % vTAG)
    spin("L_hwait", "L_hok", [poll], cmpf)
    for n, p in rare_sites.items():
        g.lab("L_rare%s" % n)
        e("s_call_b64 s[%d:%d], L_resc%d" % (sRET, sRET + 1, p))
        e("s_branch L_back%s" % n)
    for p in range(2):
        g.lab("L_resc%d" % p)
        e("s_nop 7"); e("s_nop 7")
        D = MX
        for qt in range(2):
            s0 = S(p, qt); t = D[qt]
            e("v_max3_f32 v%d, v%d, v%d, v%d" % (t, s0, s0 + 1, s0 + 2))
            for k in range(3, 15, 2): e("v_max3_f32 v%d, v%d, v%d, v%d" % (t, t, s0 + k, s0 + k + 1))
            e("v_max3_f32 v%d, v%d, v%d, 0" % (t, t, s0 + 15))
            e("v_mov_b32 v%d, v%d" % (t + 1, t))
        e("s_nop 1")
        for qt in range(2): e("v_permlane32_swap_b32 v%d, v%d" % (D[qt], D[qt] + 1))
        e("s_nop 1")
        for qt in range(2): e("v_max_f32 v%d, v%d, v%d" % (D[qt], D[qt], D[qt] + 1))
        for qt in range(2): e("v_ceil_f32 v%d, v%d" % (D[qt], D[qt]))
        for qt in range(2): e("v_exp_f32 v%d, -v%d" % (D[qt] + 1, D[qt]))
        for qt in range(2):
            for k in range(16):
                e("v_sub_f32 v%d, v%d, v%d" % (S(0, qt) + k, S(0, qt) + k, D[qt]))
                e("v_sub_f32 v%d, v%d, v%d" % (S(1, qt) + k, S(1, qt) + k, D[qt]))
                e("v_sub_f32 v%d, v%d, v%d" % (NM(qt) + k, NM(qt) + k, D[qt]))
            e("v_mul_f32 v%d, v%d, v%d" % (vLS[qt], vLS[qt], D[qt] + 1))
        for dt in range(4):
            for qt in range(2):
                a0 = 16 * (2 * dt + qt)
                for k4 in range(0, 16, 4):
                    for k in range(4): e("v_accvgpr_read_b32 v%d, a%d" % (vT + k, a0 + k4 + k))
                    for k in range(4): e("v_mul_f32 v%d, v%d, v%d" % (vT + k, vT + k, D[qt] + 1))
                    for k in range(4): e("v_accvgpr_write_b32 a%d, v%d" % (a0 + k4 + k, vT + k))
        for qt in range(2):
            for k in range(8):
                r = P(1 - p, qt, 0) + k
                e("v_lshlrev_b32 v%d, 16, v%d" % (vT, r)); e("v_and_b32 v%d, 0xffff0000, v%d" % (vT + 1, r))
                e("v_mul_f32 v%d, v%d, v%d" % (vT, vT, D[qt] + 1)); e("v_mul_f32 v%d, v%d, v%d" % (vT + 1, vT + 1, D[qt] + 1))
                e("v_cvt_pk_bf16_f32 v%d, v%d, v%d" % (r, vT, vT + 1))
        for x in sm(p): e(x)
        e("s_nop 1")
        e("s_setpc_b64 s[%d:%d]" % (sRET, sRET + 1))
    g.L += ['.section .rodata,"a"', ".p2align 6", ".amdhsa_kernel " + KNAME,
            "  .amdhsa_next_free_vgpr 512", "  .amdhsa_next_free_sgpr 102", "  .amdhsa_accum_offset 256",
            "  .amdhsa_group_segment_fixed_size 0", "  .amdhsa_kernarg_size 104", "  .amdhsa_user_sgpr_count 2",
            "  .amdhsa_user_sgpr_kernarg_segment_ptr 1", "  .amdhsa_system_sgpr_workgroup_id_x 1", ".end_amdhsa_kernel"]
    return "\n".join(g.L) + "\n"

if __name__ == "__main__":
    opts = {}
    out = "recurrent_scan__sliding_block_cached__dense_activation_squared_relu__prompt.s"
    for a in sys.argv[1:]:
        if a.startswith("-o"): out = a[2:]
        elif "=" in a:
            k, v = a.split("="); opts[k] = int(v)
        else: opts[a] = True
    open(out, "w").write(gen(opts))
```

```python
import sys, struct, math, re

KNAME = "recurrent_scan__sliding_block_cached__dense_activation_squared_relu__prompt_kernel"
RS = 40960
XROW = 1040
RSL = [20480, 24576, 28672, 32768, 36864]
def aslot(n): return RSL[(n - 43) % 5]
K0S, KA, VA, KB, VB = 16640, 20992, 25344, 29440, 33792
BSLOT = [16640, 20736, 24832, 28928, 33024]
S_OFF = 8 << 20
F_OFF = 24 << 20
HF_OFF = F_OFF + 65536
WS_SIZE = 25 << 20

def f2u(x): return struct.unpack("<I", struct.pack("<f", x))[0]

def cls_cost(it):
    if isinstance(it, list):
        cc = [cls_cost(x) for x in it]
        return (0 if all(x[0] == 0 for x in cc) else 3, sum(x[1] for x in cc))
    if isinstance(it, tuple):
        if it[0] == "vm": return (1, 8)
        if it[0] == "lg": return (1, 4)
        return (0, 4)
    s = it.strip()
    if s.endswith(":"): return (3, 0)
    m = s.split()[0]
    if m in ("v_exp_f32", "v_rcp_f32", "v_sqrt_f32", "v_rsq_f32") or m.startswith("v_pk_"): return (2, 8)
    if m.startswith("v_"): return (2, 4)
    if m == "s_nop": return (2, 4 * (int(s.split()[1]) + 1))
    if m in ("s_waitcnt", "s_barrier") or m.startswith("s_cbranch"): return (3, 4)
    return (0, 4)

class Sched:
    def __init__(self, g, mf, cap=None):
        self.g = g; self.mf = mf; self.n = len(mf)
        self.base = [8 if "16x16" in m else 24 for m in mf]
        self.caps = list(self.base) if cap is None else [cap] * self.n
        self.slots = [[] for _ in mf]; self.load = [0] * self.n; self.nvm = [0] * self.n; self.nlg = [0] * self.n
        self.nsa = [0] * self.n; self.resv = [0] * self.n
        self.pos = {}; self.seq = 0; self.maxlg = 1
    def reserve(self, gap, c): self.load[gap] += c; self.resv[gap] += c
    def put(self, sid, it, lo, hi=None, force=False, slack=None):
        if hi is None: hi = self.n - 1
        c, cost = cls_cost(it)
        isvm = isinstance(it, tuple) and it[0] == "vm"
        islg = isinstance(it, tuple) and it[0] == "lg"
        pg, pc = self.pos.get(sid, (-1, 0))
        start = max(lo, pg if (pc <= c and not (isvm and pc == 0)) else pg + 1)
        assert start <= hi, ("window", sid, it, lo, hi, pg)
        if slack is not None: hi = min(hi, max(start, lo + slack))
        def eff(t):
            if c == 0 and self.nsa[t] == 0 and not self.nvm[t] and not self.resv[t]: return cost - 4
            if isvm and self.nsa[t]: return cost + 4
            return cost
        def full(t):
            if c == 0 and eff(t) == cost and t < hi and not force: return True
            return self.load[t] + eff(t) > self.caps[t] or (isvm and self.nvm[t]) or (islg and self.base[t] == 8 and self.nlg[t] >= self.maxlg)
        t = start
        if not force:
            while t <= hi and full(t): t += 1
            if t > hi:
                t = min(range(start, hi + 1), key=lambda x: (self.load[x] + eff(x) - self.caps[x] + (8 if isvm and self.nvm[x] else 0), x))
        self.slots[t].append((c, self.seq, it)); self.seq += 1
        self.load[t] += eff(t); self.nvm[t] += isvm; self.nlg[t] += islg; self.nsa[t] += (c == 0)
        self.pos[sid] = (t, c)
        return t
    def spread(self, sid, items, lo, hi, asap=False, slack=None):
        m = len(items)
        for k, it in enumerate(items):
            tgt = lo if asap else lo + (k * (hi + 1 - lo)) // m
            self.put(sid, it, min(tgt, hi), hi if slack is None else min(self.n - 1, hi + 4), slack=slack)
    def level(self, sid, items, lo, hi, side=None):
        tot = sum(cls_cost(x)[1] for x in items)
        ex = 0
        while sum(max(0, self.base[i] + ex - self.load[i]) for i in range(lo, hi + 1)) < tot + 4 * (1 + len([x for x in items if cls_cost(x)[1] > 4]) // 2): ex += 4
        save = self.caps[lo:hi + 1]
        for i in range(lo, hi + 1): self.caps[i] = self.base[i] + ex
        for it in items:
            if side and isinstance(it, tuple): self.put(side, it, self.pos[sid][0] + 1, force=True)
            else: self.put(sid, it, lo, hi)
        self.caps[lo:hi + 1] = save
    def pour(self, sid, items, lo, hi, side=None):
        if sid in self.pos: lo = max(lo, self.pos[sid][0] + (1 if self.pos[sid][1] > 2 else 0))
        tot = sum(cls_cost(x)[1] for x in items)
        n = hi + 1 - lo
        free = sum(max(0, self.base[i] - self.load[i]) for i in range(lo, hi + 1))
        extra = max(0.0, (tot - free) / float(n))
        scale = min(1.0, tot / float(free)) if free else 1.0
        g = lo; credit = 0.0
        credit += max(0, self.base[g] - self.load[g]) * scale + extra
        for it in items:
            c = cls_cost(it)[1]
            if side and isinstance(it, tuple):
                self.put(side, it, min(g + 1, self.n - 1), force=True); credit -= c; continue
            while g < hi and (credit < c * 0.5 or (extra == 0 and self.load[g] + c > self.base[g])):
                g += 1; credit += max(0, self.base[g] - self.load[g]) * scale + extra
            t = self.put(sid, it, g, max(hi, g), force=True)
            while g < t:
                g += 1; credit += max(0, self.base[g] - self.load[g] + (c if g == t else 0)) * scale + extra
            credit -= c
    def softmax(self, sid, exps, smalls, nt, lo, hi):
        if sid in self.pos: lo = max(lo, self.pos[sid][0] + (1 if self.pos[sid][1] > 2 else 0))
        def plan(allow):
            ie = 0; js = 0; freed = 0; out = []; credit = 0.0
            done_prev = 0
            for gp in range(lo, hi + 1):
                free = self.base[gp] - self.load[gp]
                credit += allow
                done_prev = ie
                while True:
                    can_e = ie < len(exps) and ie < freed + nt
                    can_s = js < len(smalls) and smalls[js][1] <= done_prev
                    ce = cls_cost(exps[ie])[1] if can_e else 0
                    cs = cls_cost(smalls[js][0])[1] if can_s else 0
                    pick = None
                    if can_e and free >= ce: pick = "e"
                    elif can_s and free >= cs: pick = "s"
                    elif can_e and free > 0 and credit >= ce - free: pick = "e"
                    elif can_s and credit >= 2 * (cs - max(free, 0)): pick = "s"
                    elif can_e and credit >= 2 * (ce - max(free, 0)): pick = "e"
                    if pick is None: break
                    c = ce if pick == "e" else cs
                    if c > free: credit -= c - max(free, 0)
                    free -= c
                    if pick == "e": out.append((gp, exps[ie])); ie += 1
                    else:
                        out.append((gp, smalls[js][0])); freed = max(freed, smalls[js][2]); js += 1
                        if cls_cost(out[-1][1])[0] == 3: break
            return out if (ie == len(exps) and js == len(smalls)) else None
        allow = 0.0
        while True:
            out = plan(allow)
            if out: break
            allow += 0.25
            assert allow < 64
        for gp, it in out:
            if isinstance(it, list) and cls_cost(it)[0] == 3 and not any("cbranch" in x for x in it):
                for x in it: self.put(sid, x, gp, gp, force=True)
            else: self.put(sid, it, gp, gp, force=True)
        return out[-1][0]
    def emit(self, marks=None):
        for i in range(self.n):
            self.g.emit(self.mf[i])
            tags = {x[2][2] for x in self.slots[i] if isinstance(x[2], tuple) and x[2][0] in ("vm", "lg")}
            for c, _, it in self.slots[i]:
                if c == 0 and isinstance(it, tuple):
                    want = set()
                    for t in it[1:]: want |= set(t) if isinstance(t, (list, tuple)) else {t}
                    assert not (want & tags), ("wait before its ops", it, tags)
            for _, _, it in sorted(self.slots[i], key=lambda x: (x[0], x[1])): self.g.emit(it)
            if marks and i in marks: marks[i]()
        return sum(max(0, l - b) for l, b in zip(self.load, self.base))

class G:
    def __init__(self, opts):
        self.L = []; self.o = opts; self.vm = []; self.lg = []
    def e(self, s): self.L.append(s if s.endswith(":") else "    " + s)
    def lab(self, s): self.L.append(s + ":")
    def emit(self, it):
        if isinstance(it, str): self.e(it); return
        if isinstance(it, list):
            for x in it: self.emit(x)
            return
        kind = it[0]
        if kind == "vm": self.e(it[1]); self.vm.append(it[2])
        elif kind == "lg": self.e(it[1]); self.lg.append(it[2])
        elif kind == "wvm": self.e("s_waitcnt vmcnt(%d)" % self.cnt(self.vm, it[1], 63))
        elif kind == "wlg": self.e("s_waitcnt lgkmcnt(%d)" % self.cnt(self.lg, it[1], 15))
        elif kind == "wboth":
            self.e("s_waitcnt vmcnt(%d) lgkmcnt(%d)" % (self.cnt(self.vm, it[1], 63), self.cnt(self.lg, it[2], 15)))
        else: raise ValueError(kind)
    def cnt(self, lst, tags, mx):
        if not isinstance(tags, (list, tuple)): tags = [tags]
        last = -1
        for t in tags:
            idx = [i for i, x in enumerate(lst) if x == t]
            assert idx, "tag %r never issued" % (t,)
            last = max(last, idx[-1])
        return min(len(lst) - 1 - last, mx)

def vr(b, n=4): return "v[%d:%d]" % (b, b + n - 1)
def ar(b, n=4): return "a[%d:%d]" % (b, b + n - 1)
def sr(b, n=4): return "s[%d:%d]" % (b, b + n - 1)
def mfma(d, a, b, c): return "v_mfma_f32_32x32x16_bf16 %s, %s, %s, %s" % (d, a, b, c)
def mfma16(d, a, b, c): return "v_mfma_f32_16x16x32_bf16 %s, %s, %s, %s" % (d, a, b, c)

sW, sR, sG, sRC, sJ, sREG = 3, 4, 5, 6, 7, 8
sA, sB_, sC, sD, sE = 9, 10, 11, 12, 13
sP, sOPF, sOK, sOV, sOM, sOH, sOS = 14, 15, 16, 17, 18, 19, 20
sKD, sKSUM, sVD, sVSUM, sKR, sVR, sK0, sBO, sOH2, sOS2, sXO = 21, 22, 23, 24, 25, 26, 27, 28, 29, 30, 31
sCNT, sBIG, sRET = 32, 33, 34
sT0 = 36
sDBG = 38
sSPIN, sOW2, sPB = 40, 41, 42
SX, SWQ, SW1, SK, SV, SWO, SW2, SWS, SOUT, SB1, SB2 = 44, 48, 52, 56, 60, 64, 68, 72, 76, 80, 84
sIDX, sB2O, sU, sINV, sPOLL, sF = 88, 89, 92, 93, 94, 95
vLANE16 = 192; vL128 = 193; vB = [194, 195]
vWQ = [196, 197, 198, 199]; vW1 = [200, 201, 202, 203]
vWO = [204, 205, 208, 209]; vTW = [206, 207]
vKD = 208; vVD = [209, 210]; vKR = [211, 212]; vVR = [[213, 214], [215, 223]]
vTAG = 216
vRS = [218, 219, 220, 221]
LAC = [184, 188, 196, 218]; ONES = 200; vOR = 230; vDUM = 231; NT = 6
SHIFT = 16.0
vST = 222
vT = 224; AF = 224
GP = 16

def gen(opts):
    g = G(opts); e = g.e
    GG = opts.get("G", 2)
    stamps = opts.get("stamps", False)
    nst = [0]
    def stamp(fine=False):
        if stamps and not opts.get("light") and (not fine or opts.get("fine")):
            i = nst[0]; nst[0] += 1
            e("s_memtime s[90:91]"); e("s_memrealtime s[96:97]"); e("s_waitcnt lgkmcnt(0)")
            e("v_writelane_b32 v%d, s90, %d" % (vST, i)); e("v_writelane_b32 v%d, s96, %d" % (vST, 32 + i))
    hdr = open("recurrent_scan__sliding_block_cached__dense_activation_squared_relu__prompt.s.ref").read().split("\n")
    for ln in hdr:
        if ln.startswith("; @launch"): break
        g.L.append(ln)
    g.L.append("; @launch grid=(256,1,1) block=(256,1,1) lds=163840")
    g.L += ['.amdgcn_target "amdgcn-amd-amdhsa--gfx950"', ".text", ".globl " + KNAME, ".p2align 8", ".type %s,@function" % KNAME]
    g.lab(KNAME)
    e("s_cmp_ge_u32 s2, 256")
    e("s_cbranch_scc1 L_end")
    e("s_getpc_b64 s[%d:%d]" % (sPB, sPB + 1))
    g.lab("L_pc")
    e("s_and_b32 s%d, s2, 8" % sB_)
    e("s_lshl_b32 s%d, s%d, 12" % (sB_, sB_))
    e("v_lshl_add_u32 v66, v0, 7, s%d" % sB_)
    e("v_min_u32 v66, L_codeend-L_pc-4, v66")
    g.emit(("vm", "global_load_dword v66, v66, s[%d:%d]" % (sPB, sPB + 1), "cpf"))
    for d, off in ((SX, 0), (SW1, 48), (SWQ, 24), (SK, 8), (SV, 16), (SWO, 32), (SB1, 56), (SW2, 64), (SB2, 72), (SOUT, 80), (sDBG, 88), (SWS, 96)):
        e("s_load_dwordx2 s[%d:%d], s[0:1], %d" % (d, d + 1, off))
    if stamps:
        e("v_mov_b32 v%d, 0" % vST); e("s_memtime s[90:91]"); e("s_memrealtime s[96:97]")
    L0 = 64
    e("v_lshrrev_b32 v65, 6, v0")
    e("v_and_b32 v%d, 63, v0" % L0)
    e("v_readfirstlane_b32 s%d, v65" % sW)
    e("s_lshr_b32 s%d, s2, 3" % sIDX)
    e("s_and_b32 s%d, s2, 7" % sE)
    lg = {1: 0, 2: 1, 4: 2, 8: 3}[GG]
    e("s_lshr_b32 s%d, s%d, %d" % (sP, sIDX, lg))
    e("s_lshr_b32 s%d, s%d, %d" % (sB_, sE, 3 - lg))
    e("s_lshl_b32 s%d, s%d, %d" % (sB_, sB_, 5 - lg))
    e("s_add_u32 s%d, s%d, s%d" % (sR, sB_, sP))
    vXL, vXW = 67, 68
    e("v_lshrrev_b32 v65, 3, v%d" % L0)
    e("v_and_b32 v69, 7, v%d" % L0)
    e("v_lshlrev_b32 v%d, 10, v65" % vXL)
    e("v_lshl_or_b32 v%d, v69, 4, v%d" % (vXL, vXL))
    e("s_lshl_b32 s%d, s%d, 2" % (sA, sR))
    e("s_add_u32 s%d, s%d, s%d" % (sA, sA, sW))
    e("s_lshl_b32 s%d, s%d, 14" % (sA, sA))
    e("s_add_u32 s%d, s%d, 8192" % (sB_, sA))
    for d, size in ((SX, 2048 * 512 * 2), (SW1, 512 * 1792 * 2), (SWQ, 512 * 4096 * 2), (SK, 0x20000), (SV, 0x20000), (SWO, 0x80000),
                    (SB1, 1792 * 2), (SW2, 1792 * 512 * 2), (SB2, 1024), (SOUT, 2048 * 512 * 2), (SWS, WS_SIZE)):
        e("s_mov_b32 s%d, 0x%x" % (d + 2, size)); e("s_mov_b32 s%d, 0x20000" % (d + 3))
    e("s_waitcnt lgkmcnt(0)")
    if stamps:
        e("v_writelane_b32 v%d, s90, 0" % vST); e("v_writelane_b32 v%d, s96, 62" % vST); e("v_writelane_b32 v%d, s96, 32" % vST); nst[0] = 1
    XR = 0
    for i in range(16):
        rg, cb = i // 8, i % 8
        g.emit(("vm", "buffer_load_dwordx4 %s, v%d, %s, s%d offen offset:%d" % (vr(XR + 4 * i), vXL, sr(SX), sB_ if rg else sA, cb * 128), "x%d" % i))
    stamp(True)
    e("v_lshlrev_b32 v%d, 7, v%d" % (vL128, L0))
    e("s_and_b32 s%d, s%d, %d" % (sB_, sE, 8 // GG - 1))
    e("s_lshl_b32 s%d, s%d, %d" % (sB_, sB_, lg))
    e("s_and_b32 s%d, s%d, %d" % (sC, sIDX, GG - 1))
    e("s_add_u32 s%d, s%d, s%d" % (sG, sB_, sC))
    e("s_lshl_b32 s%d, s%d, 2" % (sRC, sE))
    e("s_lshr_b32 s%d, s%d, 3" % (sB_, sIDX))
    e("s_add_u32 s%d, s%d, s%d" % (sRC, sRC, sB_))
    e("s_and_b32 s%d, s%d, 7" % (sJ, sIDX))
    e("s_mul_i32 s%d, s%d, %d" % (sREG, sW, RS))
    e("v_mul_u32_u24 v70, %d, v65" % XROW)
    e("v_add_u32 v70, s%d, v70" % sREG)
    e("v_lshl_add_u32 v%d, v69, 4, v70" % vXW)
    H, R_, C_, T4, T2 = 71, 72, 73, 74, 75
    e("v_lshrrev_b32 v%d, 5, v%d" % (H, L0))
    e("v_bfe_u32 v%d, v%d, 2, 2" % (R_, L0))
    e("v_and_b32 v%d, 3, v%d" % (C_, L0))
    e("v_lshrrev_b32 v%d, 4, v%d" % (T4, L0))
    e("v_and_b32 v%d, 1, v%d" % (T2, T4))
    e("v_lshlrev_b32 v76, 6, v%d" % T2)
    e("v_lshl_or_b32 v76, v%d, 4, v76" % C_)
    e("v_lshl_add_u32 v77, v%d, 2, v%d" % (H, R_))
    e("s_lshr_b32 s%d, s%d, 1" % (sA, sG))
    e("s_mul_i32 s%d, s%d, 7" % (sU, sA))
    e("s_and_b32 s%d, s%d, 1" % (sA, sG))
    e("s_lshl_b32 s%d, s%d, 2" % (sA, sA))
    e("s_add_u32 s%d, s%d, s%d" % (sA, sA, sW))
    e("s_add_u32 s%d, s%d, s%d" % (sU, sU, sA))
    e("s_cmp_eq_u32 s%d, 7" % sA)
    e("s_cselect_b32 s%d, 0x40000000, 0" % sINV)
    e("v_mul_u32_u24 v78, 3584, v77")
    e("v_add3_u32 v%d, v78, v76, s%d" % (vW1[0], sINV))
    def dmaoffs(vo, stride):
        st = 8 * stride - 1024
        return ["v_xor_b32 v%d, 32, v%d" % (vo[1], vo[0]), "v_add_u32 v%d, %d, v%d" % (vo[1], st, vo[1]),
                "v_add_u32 v%d, %d, v%d" % (vo[2], 2 * st, vo[0]), "v_add_u32 v%d, %d, v%d" % (vo[3], 2 * st, vo[1])]
    g.emit(dmaoffs(vW1, 3584))
    RG = opts.get("rg", 1); lrg = {1: 0, 2: 1, 4: 2}[RG]
    e("s_and_b32 s%d, s%d, %d" % (sK0, sP, 16 // RG - 1))
    e("s_lshl_b32 s%d, s%d, 7" % (sOH, sU))
    e("s_mul_i32 s%d, s%d, %d" % (sOM, sK0, RG * 32 * 3584))
    e("s_add_u32 s%d, s%d, s%d" % (sOM, sOM, sOH))
    e("s_lshl_b32 s%d, s%d, %d" % (sBO, sK0, 6 + lrg))
    W1TOT = 512 * 3584
    def adma(n):
        ps = n // 16
        srdn, vo = (SW1, vW1) if ps == 0 else (SWQ, vWQ)
        pre = ["s_add_u32 m0, s%d, %d" % (sREG, aslot(n))]
        if n == 16: pre += ["s_mov_b32 s%d, s%d" % (sOM, sF)]
        elif n > 16:
            pre += ["s_add_u32 s%d, s%d, %d" % (sOM, sOM, (1 << 18) + (128 if n == 32 else 0))]
            if n % RG == 0: pre += ["s_and_b32 s%d, s%d, 0x3fffff" % (sOM, sOM)]
        elif n > 0:
            pre += ["s_add_u32 s%d, s%d, %d" % (sOM, sOM, 32 * 3584)]
            if n % RG == 0: pre += [["s_cmp_ge_u32 s%d, %d" % (sOM, W1TOT), "s_cselect_b32 s%d, s%d, s%d" % (sOM, sOH, sOM)]]
        else: pre.append("s_nop 0")
        return pre + [("vm", "buffer_load_dwordx4 v%d, %s, s%d offen offset:%d lds" % (vo[b], sr(srdn), sOM, b * 1024), "m%d" % n) for b in range(4)]
    vTA = vVR[0]
    e("v_lshlrev_b32 v78, 3, v%d" % C_)
    e("v_lshl_or_b32 v78, v%d, 6, v78" % R_)
    e("v_lshl_or_b32 v78, v%d, 5, v78" % T2)
    e("v_lshl_add_u32 v79, v%d, 10, v78" % T4)
    e("v_add_u32 v%d, s%d, v79" % (vTA[0], sREG))
    e("v_xor_b32 v%d, 32, v%d" % (vTA[1], vTA[0]))
    e("v_and_b32 v80, 15, v%d" % L0)
    e("v_mul_u32_u24 v81, %d, v80" % XROW)
    e("v_lshl_add_u32 v%d, v%d, 4, v81" % (vB[0], T4))
    e("v_add_u32 v%d, %d, v%d" % (vB[1], 2 * RS, vB[0]))
    vBR = [110, 111]
    for k in range(2): e("v_add_u32 v%d, s%d, v%d" % (vBR[k], sBO, vB[k]))
    e("v_add_u32 v89, %d, v81" % (2 * RS))
    late = []
    a = late.append
    a("v_lshl_add_u32 v%d, v77, 13, v76" % vWQ[0]); late += dmaoffs(vWQ, 8192)
    a("v_lshlrev_b32 v82, 3, v%d" % T4)
    a("v_lshl_add_u32 v%d, v77, 10, v76" % vWO[0])
    a("v_lshlrev_b32 v76, 5, v%d" % H)
    a("v_xor_b32 v%d, v76, v%d" % (vWO[0], vWO[0]))
    a("v_add_u32 v%d, %d, v%d" % (vWO[1], 8192 - 1024, vWO[0]))
    a("v_lshl_add_u32 v76, v%d, 9, v78" % T4)
    a("v_add_u32 v%d, s%d, v76" % (vTW[0], sREG))
    a("v_xor_b32 v%d, 32, v%d" % (vTW[1], vTW[0]))
    a("v_lshlrev_b32 v%d, 4, v%d" % (vLANE16, L0))
    a("v_lshlrev_b32 v76, 6, v%d" % T4)
    a("v_lshl_or_b32 v76, v%d, 4, v76" % C_)
    a("v_lshl_add_u32 v%d, v%d, 8, v76" % (vVD[0], R_))
    a("v_xor_b32 v%d, 32, v%d" % (vVD[1], vVD[0]))
    a("v_add_u32 v%d, %d, v79" % (vVR[1][0], VA + 2 * RS))
    a("v_xor_b32 v%d, 32, v%d" % (vVR[1][1], vVR[1][0]))
    a("v_xor_b32 v77, v80, v%d" % T4)
    a("v_lshlrev_b32 v77, 4, v77")
    a("v_lshl_or_b32 v%d, v%d, 8, v77" % (vKD, T4))
    a("v_lshl_add_u32 v76, v%d, 1, v%d" % (T2, H))
    a("v_xor_b32 v76, v76, v%d" % C_)
    a("v_mul_u32_u24 v77, 1088, v%d" % R_)
    a("v_lshl_add_u32 v77, v%d, 8, v77" % C_)
    a("v_lshl_add_u32 v%d, v76, 4, v77" % vKR[0])
    a("v_add_u32 v%d, %d, v%d" % (vKR[1], 2 * RS, vKR[0]))
    assert (VA & 32) == 0 and (VB & 32) == 0
    lates = []
    a = lates.append
    a("s_lshl_b32 s%d, s%d, 10" % (sF, sG)); a("s_lshl_b32 s%d, s%d, 8" % (sA, sW)); a("s_add_u32 s%d, s%d, s%d" % (sF, sF, sA))
    a("s_lshl_b32 s%d, s%d, %d" % (sA, sK0, 18 + lrg)); a("s_add_u32 s%d, s%d, s%d" % (sF, sF, sA))
    a("s_lshl_b32 s%d, s%d, %d" % (sOV, sP, 14 + (1 if GG == 8 else 0)))
    a("s_lshl_b32 s%d, s%d, 12" % (sA, sW)); a("s_add_u32 s%d, s%d, s%d" % (sOV, sOV, sA))
    a("s_sub_u32 s%d, s%d, %d" % (sOK, sOV, 32 * 256))
    a("s_and_b32 s%d, s%d, 0x1ffff" % (sOV, sOV)); a("s_and_b32 s%d, s%d, 0x1ffff" % (sOK, sOK))
    a("s_mov_b32 s%d, 0x40004000" % sBIG); a("s_mov_b32 s%d, 0" % sSPIN)
    e("s_lshl_b32 s%d, s%d, 19" % (sA, sG))
    e("s_add_u32 s%d, s%d, s%d" % (SWO, SWO, sA)); e("s_addc_u32 s%d, s%d, 0" % (SWO + 1, SWO + 1))
    e("s_add_u32 s%d, s%d, %d" % (sA, sA, 1536 * 256))
    for d in (SK, SV): e("s_add_u32 s%d, s%d, s%d" % (d, d, sA)); e("s_addc_u32 s%d, s%d, 0" % (d + 1, d + 1))
    e("s_lshl_b32 s%d, s%d, 2" % (sE, sP)); e("s_add_u32 s%d, s%d, s%d" % (sE, sE, sW))
    e("s_lshl_b32 s%d, s%d, %d" % (sOPF, sE, 12 + lg))
    e("s_lshl_b32 s%d, s%d, %d" % (sE, sE, 10 + lg))
    e("v_and_b32 v84, 0x%x, v%d" % (1024 * GG - 128, vL128))
    e("s_or_b32 s%d, s2, s%d" % (sA, sW))
    e("s_cmp_lg_u32 s%d, 0" % sA)
    e("s_cbranch_scc0 L_mktag")
    g.lab("L_notag")
    ONE, OLO, OHI = 86, 87, 88
    SUM = [90, 91, 92, 93]; SQ = [94, 95, 96, 97]
    e("v_mov_b32 v%d, 0x3f803f80" % ONE); e("v_mov_b32 v%d, 0x3f80" % OLO); e("v_mov_b32 v%d, 0x3f800000" % OHI)
    for x in SUM + SQ: e("v_mov_b32 v%d, 0" % x)
    e("s_mov_b32 s%d, 0x%x" % (sC, f2u(1.0 / 512)))
    e("s_mov_b32 s%d, 0x%x" % (sD, f2u(1e-5)))
    NEGM = [98, 99]
    dq = []
    for n in range(5):
        a_ = adma(n)
        k = [i for i, x in enumerate(a_) if isinstance(x, tuple)][0]
        dq += [a_[:k + 1]] + [[x] for x in a_[k + 1:]]
    dq += [[("vm", "buffer_load_dword v85, v84, %s, s%d offen" % (sr(srd_), sE), "pf")] for srd_ in (SK, SV)]
    for _ in range(opts.get("early", 0)): g.emit(dq.pop(0))
    stamp(True)
    for rg in range(2):
        for i in range(8 * rg, 8 * rg + 8):
            g.emit(("wvm", "x%d" % i))
            for d in range(4):
                x = XR + 4 * i + d
                e("v_dot2c_f32_bf16 v%d, v%d, v%d" % (SUM[2 * rg + d % 2], x, ONE))
                e("v_dot2c_f32_bf16 v%d, v%d, v%d" % (SQ[2 * rg + d % 2], x, x))
            for _ in range(opts.get("dst", 1)):
                if len(dq) > opts.get("keep", 0): g.emit(dq.pop(0))
        stamp(True)
        m, q = SUM[2 * rg], SQ[2 * rg]
        e("s_nop 2")
        e("v_add_f32 v%d, v%d, v%d" % (m, m, m + 1))
        e("v_add_f32 v%d, v%d, v%d" % (q, q, q + 1))
        for pat in ("quad_perm:[1,0,3,2]", "quad_perm:[2,3,0,1]", "row_half_mirror"):
            e("s_nop 0")
            for x in (m, q): e("v_add_f32_dpp v%d, v%d, v%d %s row_mask:0xf bank_mask:0xf" % (x, x, x, pat))
        e("v_mul_f32 v%d, s%d, v%d" % (m, sC, m))
        e("v_cvt_pk_bf16_f32 v100, v%d, v%d" % (m, m))
        e("v_and_b32 v100, 0xffff0000, v100")
        e("v_xor_b32 v%d, 0x80000000, v100" % NEGM[rg])
        for i in range(8 * rg, 8 * rg + 8):
            cb = i % 8
            for d in range(4):
                x = XR + 4 * i + d
                e("v_dot2_f32_bf16 v%d, v%d, v%d, v%d" % (102 + 2 * d, x, OLO, NEGM[rg]))
                e("v_dot2_f32_bf16 v%d, v%d, v%d, v%d" % (103 + 2 * d, x, OHI, NEGM[rg]))
            for d in range(4):
                e("v_cvt_pk_bf16_f32 v%d, v%d, v%d" % (XR + 4 * i + d, 102 + 2 * d, 103 + 2 * d))
            e("ds_write_b128 v%d, %s offset:%d" % (vXW, vr(XR + 4 * i), rg * 8 * XROW + cb * 128))
            if rg and len(dq) > max(2, opts.get("keep", 0)): g.emit(dq.pop(0))
        stamp(True)
    while dq: g.emit(dq.pop(0))
    for rg in range(2):
        m, q = SUM[2 * rg], SQ[2 * rg]
        e("v_mul_f32 v%d, s%d, v%d" % (q, sC, q))
        e("v_fma_f32 v%d, -v%d, v%d, v%d" % (q, m, m, q))
        e("v_max_f32 v%d, 0, v%d" % (q, q))
    e("v_cvt_pk_bf16_f32 v100, v%d, v%d" % (SQ[0], SQ[2]))
    e("v_lshlrev_b32 v101, 16, v100"); e("v_and_b32 v100, 0xffff0000, v100")
    e("v_add_f32 v101, s%d, v101" % sD); e("v_add_f32 v100, s%d, v100" % sD)
    e("v_cvt_pk_bf16_f32 v100, v101, v100")
    e("v_lshlrev_b32 v101, 16, v100"); e("v_and_b32 v100, 0xffff0000, v100")
    e("v_sqrt_f32 v101, v101"); e("v_sqrt_f32 v100, v100"); e("s_nop 0")
    e("v_cvt_pk_bf16_f32 v100, v101, v100")
    e("v_lshlrev_b32 v101, 16, v100"); e("v_and_b32 v100, 0xffff0000, v100")
    e("v_rcp_f32 v101, v101"); e("v_rcp_f32 v100, v100"); e("s_nop 0")
    e("ds_write_b32 v70, v101 offset:1024")
    e("ds_write_b32 v70, v100 offset:%d" % (1024 + 8 * XROW))
    g.emit(("wvm", "m0"))
    def areads(n, slot, tag, regs, astep):
        base = AF + 16 * (n % 2)
        return [("lg", "ds_read_b64_tr_b16 %s, v%d offset:%d" % (vr(base + 4 * mt + 2 * a, 2), regs[mt % 2], slot + a * astep + (mt // 2) * 256), tag)
                for mt in range(4) for a in range(2)]
    def breads(dst, addr, off, tag):
        return [("lg", "ds_read_b128 %s, v%d offset:%d" % (dst(q4), addr[q4 // 2], off + (q4 % 2) * RS), tag) for q4 in range(4)]
    def acc16(accb, mt, q4): return vr(accb + 8 * (4 * (mt // 2) + q4) + 4 * (mt % 2))
    def macro_mf(n, accb, bsrc, first):
        base = AF + 16 * (n % 2)
        return [mfma16(acc16(accb, mt, q4), vr(base + 4 * mt), bsrc(q4), "0" if first else acc16(accb, mt, q4)) for mt in range(4) for q4 in range(4)]
    def kdma(m0, tag):
        it = []
        for b in range(4):
            it += [m0(b), ("vm", "buffer_load_dwordx4 v%d, %s, s%d offen offset:%d lds" % (vKD, sr(SK), sOK, b * 1024), tag)]
        return it + ["s_add_u32 s%d, s%d, 0x4000" % (sOK, sOK), "s_and_b32 s%d, s%d, 0x1ffff" % (sOK, sOK)]
    def vdma(m0, tag):
        return [m0] + [("vm", "buffer_load_dwordx4 v%d, %s, s%d offen offset:%d lds" % (vVD[b % 2], sr(SV), sOV, b * 1024), tag) for b in range(4)] + \
               ["s_add_u32 s%d, s%d, 0x4000" % (sOV, sOV), "s_and_b32 s%d, s%d, 0x1ffff" % (sOV, sOV)]
    def kdma_s(slot, tag): return kdma(lambda b: "s_add_u32 m0, s%d, %d" % (sREG, slot + 64 * b), tag)
    def vdma_s(slot, tag): return vdma("s_add_u32 m0, s%d, %d" % (sREG, slot), tag)
    def bupd(regs, step=256): return ["s_add_u32 s%d, s%d, %d" % (sBO, sBO, step), "s_and_b32 s%d, s%d, 0x3ff" % (sBO, sBO)] + ["v_add_u32 v%d, s%d, v%d" % (regs[k], sBO, vB[k]) for k in range(2)]
    DG = [3, 7, 11, 14]
    def res_dma(sc, g0, sign):
        for k in DG: sc.reserve(g0 + k, 8 * sign)
    def place_dma(sc, dm, g0):
        res_dma(sc, g0, -1)
        k = 0
        for it in dm:
            if isinstance(it, tuple): sc.put("dma", it, g0 + DG[k], g0 + DG[k], force=True); k += 1
            elif k < 4:
                sc.reserve(g0 + DG[k], 8); sc.put("dma", it, max(g0 - 1, 0), g0 + DG[k] - 1); sc.reserve(g0 + DG[k], -8)
            else: sc.put("dma", it, g0, min(g0 + GP + 1, sc.n - 1))
    def place_reads(sc, rd, b, g0):
        if b:
            sc.maxlg = 2
            sc.spread("rd", rd[:2] + b[:2] + rd[2:4] + b[2:], g0, g0 + 11, asap=True)
            sc.maxlg = 1
            sc.spread("rd", rd[4:], g0, g0 + 11, asap=True)
        else: sc.spread("rd", rd, g0, g0 + 11, asap=True)
    def swaps(b): return ["v_permlane16_swap_b32 v%d, v%d" % (b + k, b + 2 + k) for k in range(2)]
    ardA = lambda n: areads(n, aslot(n), "r%d" % n, vTA, 512)

    g.emit(ardA(0))
    e("s_waitcnt lgkmcnt(8)")
    stamp(True)
    e("s_barrier")
    stamp()
    aB = lambda n: (lambda q4: ar(16 * (n % 16) + 4 * q4))
    g.emit(breads(aB(0), vBR, 0, "r0"))
    for q4 in range(4): g.emit(("lg", "ds_read_b32 v%d, v%d offset:%d" % (vRS[q4], 81 if q4 < 2 else 89, 1024 + (q4 % 2) * RS), "rs"))
    if RG == 1: g.emit(bupd(vBR, 64))
    g.emit(("wboth", "m1", "r0"))
    mf = []
    for n in range(48): mf += macro_mf(n, [128, 0, 64][n // 16], aB(n), n % 16 == 0)
    sc = Sched(g, mf)
    for n in range(47): res_dma(sc, GP * n, 1)
    for n in range(47):
        g0 = GP * n
        wv = ["m%d" % (n + 2)] if n + 2 < 48 else None
        sc.put("w", ("wboth", wv, "r%d" % (n + 1)) if wv else ("wlg", "r%d" % (n + 1)), g0 + GP - 1, g0 + GP - 1, force=True)
        b = breads(aB(n + 1), vBR, 64 * ((n + 1) % RG), "r%d" % (n + 1)) if n + 1 < 16 else None
        place_reads(sc, ardA(n + 1), b, g0)
        if (n + 2) % RG == 0 and n + 2 < 16: sc.spread("rd", bupd(vBR, 64 * RG), g0 + 6, g0 + GP - 1, asap=True)
    for n in range(47):
        place_dma(sc, adma(n + 5) if n + 5 < 48 else [kdma_s(K0S, "k0"), kdma_s(KA, "k1"), vdma_s(VA, "v0"), kdma_s(KB, "k2")][n - 43], GP * n)
    XC = opts.get("xcap", 8)
    if XC:
        for i in range(GP * 16, GP * 48, XC): sc.caps[i] += 4
    for i in range(0, GP * 16, 2): sc.caps[i] += 4
    sc.spread("l", late, 0, GP * 10, asap=True)
    sc.spread("ls", lates, 0, GP * 10, asap=True)
    BIAS, BU = 112, 90
    sc.spread("x", [("vm", "buffer_load_dwordx2 %s, v82, %s, s%d offen offset:%d" % (vr(BIAS + 2 * mt, 2), sr(SB1), sOH, 32 * mt), "b1") for mt in range(4)], GP * 11, GP * 13, slack=3)
    hep = [("wvm", "b1")]
    for k in range(8):
        hep += ["v_lshlrev_b32 v%d, 16, v%d" % (BU + 2 * k, BIAS + k), "v_and_b32 v%d, 0xffff0000, v%d" % (BU + 2 * k + 1, BIAS + k)]
    sc.spread("x", hep, GP * 15 + 8, GP * 17, asap=True)
    def hdst(t, q4): return 160 + 8 * q4 + (4 if t == 0 else 0)
    hep = []
    for t in (1, 0):
        for q4 in range(4):
            b = 128 + 8 * (4 * t + q4)
            hep += ["v_fma_f32 v%d, v%d, v%d, v%d" % (b + k, b + k, vRS[q4], BU + 8 * t + k) for k in range(8)]
    sc.spread("x", hep, GP * 16 + 8, GP * 32 - 4, asap=True)
    hep = ["s_mov_b32 s%d, 0x%x" % (sD, f2u(math.log2(math.e) / math.sqrt(128.0)))] + ["v_mul_f32 v%d, s%d, v%d" % (vRS[k], sD, vRS[k]) for k in range(4)]
    for t in (1, 0):
        for q4 in range(4):
            b = 128 + 8 * (4 * t + q4)
            hep += ["v_max_f32 v%d, 0, v%d" % (b + k, b + k) for k in range(8)]
            hep += ["v_mul_f32 v%d, v%d, v%d" % (b + k, b + k, b + k) for k in range(8)]
            hep += ["v_cvt_pk_bf16_f32 v%d, v%d, v%d" % (hdst(t, q4) + k, b + 2 * k, b + 2 * k + 1) for k in range(4)]
    sc.spread("x", hep, GP * 16, GP * 48 - 1, asap=True)
    def qpack(half):
        it = []; pend = []
        for gi in range(8 * half, 8 * half + 8):
            b = 8 * gi; d = 4 * gi
            it += ["v_mul_f32 v%d, v%d, v%d" % (b + k, b + k, vRS[gi % 4]) for k in range(8)] + pend
            it += ["v_cvt_pk_bf16_f32 v%d, v%d, v%d" % (d + k, b + 2 * k, b + 2 * k + 1) for k in range(4)]
            pend = swaps(d)
        return it + ["s_nop 1"] + pend
    vZ = 240; vFO = 241; vFL = 242; vP16 = 244
    sc.spread("y", ["v_mov_b32 v%d, 0" % vTAG, ("vm", "global_load_dwordx2 %s, v%d, s[%d:%d] sc1" % (vr(vTAG, 2), vTAG, sDBG, sDBG + 1), "tag")], GP * 12, GP * 13, slack=3)
    su = ["s_mul_i32 s%d, s%d, %d" % (sOH, sR, 224 * 1024),
          "s_lshl_b32 s%d, s%d, 13" % (sA, sU), "s_add_u32 s%d, s%d, s%d" % (sOH, sOH, sA), "s_add_u32 s%d, s%d, s%d" % (sOH, sOH, sINV),
          "s_add_u32 s%d, s%d, 4096" % (sOH2, sOH),
          "s_add_u32 s%d, s%d, %d" % (sKD, sREG, KA), "s_add_u32 s%d, s%d, %d" % (sVD, sREG, VB),
          "s_lshl_b32 s%d, s%d, 1" % (sA, sREG), "s_add_u32 s%d, s%d, %d" % (sKSUM, sA, KA + KB), "s_add_u32 s%d, s%d, %d" % (sVSUM, sA, VA + VB),
          "s_mov_b32 s%d, 0x%x" % (sKR, (KA - KB) & 0xffffffff), "s_mov_b32 s%d, 0x%x" % (sVR, (VB - VA) & 0xffffffff),
          "s_mov_b32 s%d, 0" % sCNT,
          "s_mul_i32 s%d, s%d, %d" % (sOW2, sW, 448 * 1024), "s_lshl_b32 s%d, s%d, 7" % (sA, sJ), "s_add_u32 s%d, s%d, s%d" % (sOW2, sOW2, sA),
          "s_lshl_b32 s%d, s%d, 8" % (sOS, sR), "s_lshl_b32 s%d, s%d, 5" % (sA, sG), "s_add_u32 s%d, s%d, s%d" % (sOS, sOS, sA),
          "s_lshl_b32 s%d, s%d, 3" % (sA, sW), "s_add_u32 s%d, s%d, s%d" % (sOS, sOS, sA), "s_add_u32 s%d, s%d, 0x%x" % (sOS, sOS, HF_OFF),
          "s_lshl_b32 s%d, s%d, 8" % (sPOLL, sRC), "s_lshl_b32 s%d, s%d, 6" % (sA, sW), "s_add_u32 s%d, s%d, s%d" % (sPOLL, sPOLL, sA),
          "s_add_u32 s%d, s%d, 0x%x" % (sPOLL, sPOLL, HF_OFF),
          "s_lshl_b32 s%d, s2, 2" % sC, "s_add_u32 s%d, s%d, s%d" % (sC, sC, sW), "s_lshl_b32 s%d, s%d, 11" % (sC, sC),
          "s_mul_i32 s%d, s%d, %d" % (sF, sRC, 224 * 1024), "s_mul_i32 s%d, s%d, %d" % (sA, sW, 56 * 1024), "s_add_u32 s%d, s%d, s%d" % (sF, sF, sA),
          ] + ["v_mov_b32 v%d, 0x3f803f80" % (ONES + k) for k in range(4)]
    sHL = sF
    sc.spread("x", qpack(0), GP * 32 + 8, GP * 48 - 1, asap=True)
    sc.spread("y", su, GP * 24, GP * 48 - 1, asap=True)
    sc.spread("rd", ["v_add_u32 v%d, %d, v%d" % (vVR[0][k], (-2 * RS) & 0xffffffff, vVR[1][k]) for k in range(2)], GP * 47, GP * 48 - 1, asap=True)
    ov = sc.emit({GP * 16 - 1: stamp, GP * 32 - 1: stamp})
    if opts.get("v"): print("stream A overflow", ov, "x end", sc.pos["x"][0] / GP, "y end", sc.pos["y"][0] / GP)
    stamp()
    KF, VF = 128, 160
    FA, FB = 232, [248, 252, 176, 180]
    def kreads(u, slot, dst, tag):
        return [("lg", "ds_read_b128 %s, v%d offset:%d" % (ar(dst + 4 * s), vKR[u], slot + (s % 2) * RS + (s // 2) * 64), tag) for s in range(8)]
    def vreads(u, dst, tag):
        return [("lg", "ds_read_b64_tr_b16 %s, v%d offset:%d" % (ar(dst + 4 * f + 2 * a, 2), vVR[u][f % 2], a * RS + (f // 2) * 256), tag) for f in range(8) for a in range(2)]
    def S(p): return 64 if p else 128
    def P(p, q4): return 96 + 16 * p + 4 * q4
    def NM(q4): return 160 + 4 * q4
    def OA(f, q4): return 8 * (4 * (f // 2) + q4) + 4 * (f % 2)
    def qk(p, kf, first_c):
        mf = []
        for s in range(8):
            for q4 in range(4):
                d = vr(S(p) + 8 * q4 + 4 * (s % 2))
                mf.append(mfma16(d, ar(kf + 4 * s), vr(4 * (4 * (s // 2) + q4)), d if s >= 2 else first_c(q4)))
        return mf
    def pv(p, vf, zero=False):
        return [mfma16(vr(LAC[q4]), vr(ONES), vr(P(p, q4)), "0" if zero else vr(LAC[q4])) for q4 in range(4)] + \
               [mfma16(ar(OA(f, q4)), ar(vf + 4 * f), vr(P(p, q4)), "0" if zero else ar(OA(f, q4))) for f in range(8) for q4 in range(4)]
    def fmac(fa, fb):
        return [mfma16(ar(192 + 16 * q4 + 4 * mt), vr(fa + 4 * mt), vr(fb[q4]), ar(192 + 16 * q4 + 4 * mt)) for mt in range(4) for q4 in range(4)]
    def freads(m, fa, tag):
        return [("lg", "ds_read_b64_tr_b16 %s, v%d offset:%d" % (vr(fa + 4 * mt + 2 * a, 2), vTW[mt % 2], 4096 * m + a * 2048 + (mt // 2) * 256), tag) for mt in range(4) for a in range(2)]
    def w2dma(m, tag):
        it = []
        for hh in range(2):
            it += ["s_add_u32 m0, s%d, %d" % (sREG, 4096 * m + 2048 * hh)]
            it += [("vm", "buffer_load_dwordx4 v%d, %s, s%d offen offset:%d lds" % (vWO[b], sr(SW2), sOW2, b * 1024), tag) for b in range(2)]
            it += ["s_add_u32 s%d, s%d, 0x4000" % (sOW2, sOW2)]
        return it
    def hload(fb, tag):
        return [("vm", "buffer_load_dwordx4 %s, v%d, %s, s%d offen offset:%d sc1" % (vr(fb[q4]), vLANE16, sr(SWS), sHL, 1024 * q4), tag) for q4 in range(4)] + \
               ["s_add_u32 s%d, s%d, 4096" % (sHL, sHL)]
    rare_sites = {}
    def smx(p, name=None, subs=None):
        T = lambda i: vT + (i % NT)
        exps = [([subs[i]] if subs else []) + ["v_exp_f32 v%d, v%d" % (T(i), S(p) + i)] for i in range(32)]
        exps = [x if len(x) > 1 else x[0] for x in exps]
        sm_ = []
        for j in range(16):
            sm_.append(("v_cvt_pk_bf16_f32 v%d, v%d, v%d" % (P(p, 0) + j, T(2 * j), T(2 * j + 1)), 2 * j + 2, 2 * j + 2))
            if name:
                if j == 2: sm_.append(("v_or3_b32 v%d, v%d, v%d, v%d" % (vOR, P(p, 0), P(p, 0) + 1, P(p, 0) + 2), 0, 0))
                elif j > 2 and j % 2 == 0: sm_.append(("v_or3_b32 v%d, v%d, v%d, v%d" % (vOR, vOR, P(p, 0) + j - 1, P(p, 0) + j), 0, 0))
        if name:
            rare_sites[name] = p
            sm_.append(("v_or_b32 v%d, v%d, v%d" % (vOR, vOR, P(p, 0) + 15), 0, 0))
            sm_.append(("v_and_b32 v%d, s%d, v%d" % (vOR, sBIG, vOR), 0, 0))
            sm_.append(("v_cmp_ne_u32 vcc, 0, v%d" % vOR, 0, 0))
            sm_.append((["s_cbranch_vccnz L_rare%s" % name, "L_back%s:" % name], 0, 0))
        return exps, sm_
    def sm_flat(p):
        ex, sm_ = smx(p)
        x = ex[:2]
        for j in range(16): x += ex[2 * j + 2:2 * j + 4] + (["s_nop 0"] if j == 15 else []) + [sm_[j][0]]
        return x
    def allreduce(op, regs, tmps, fill):
        it = []
        for sw in ("v_permlane16_swap_b32", "v_permlane32_swap_b32"):
            it += ["v_mov_b32 v%d, v%d" % (t, r) for r, t in zip(regs, tmps)] + fill()
            it += ["%s v%d, v%d" % (sw, t, r) for r, t in zip(regs, tmps)]
            it += ["%s v%d, v%d, v%d" % (op, r, r, t) for r, t in zip(regs, tmps)]
        return it
    def rowmax(p, regs):
        it = []
        for q4 in range(4):
            s0 = S(p) + 8 * q4; t = regs[q4]
            it += ["v_max3_f32 v%d, v%d, v%d, v%d" % (t, s0, s0 + 1, s0 + 2), "v_max3_f32 v%d, v%d, v%d, v%d" % (t, t, s0 + 3, s0 + 4),
                   "v_max3_f32 v%d, v%d, v%d, v%d" % (t, t, s0 + 5, s0 + 6),
                   "v_max_f32 v%d, v%d, v%d" % (t, t, s0 + 7)]
        return it
    poll = "buffer_load_dwordx2 %s, v%d, %s, s%d offen sc1" % (vr(vFL, 2), vFO, sr(SWS), sPOLL)
    cmpf = "v_cmp_ne_u64 vcc, %s, %s" % (vr(vFL, 2), vr(vTAG, 2))
    g.emit(("wvm", ["k0", "k1"]))
    e("s_barrier")
    stamp(True)
    g.emit(kreads(1, K0S, KF, "kf0"))
    g.emit(kreads(0, KA, VF, "kf1"))
    qp = qpack(1)
    g.emit(qp[:30])
    g.emit(("wlg", "kf0"))
    sc = Sched(g, qk(0, KF, lambda q4: "0"))
    hst = [("vm", "buffer_store_dwordx4 %s, v%d, %s, s%d offen offset:%d sc1" % (vr(hdst(t, q4)), vLANE16, sr(SWS), [sOH, sOH2][t], q4 * 1024), "hst")
           for q4 in range(4) for t in range(2)]
    sc.spread("h", hst, 0, 25)
    h1 = len(qp) // 2 + 9
    sc.pour("q", qp[30:h1] + ["s_nop 0"], 0, 15)
    sc.pour("q", qp[h1:] + ["s_nop 1"], 8, 23)
    sc.spread("h", ["v_and_b32 v%d, 0x780, v%d" % (vP16, vL128), ("vm", "buffer_load_dword v%d, v%d, %s, s%d offen" % (vP16, vP16, sr(SW2), sC), "pf")], 26, 29)
    ZOFF = 40704; vZA = 245; vZB = 246
    sc.spread("z", ["v_mov_b32 v%d, 0" % vZ, "v_lshrrev_b32 v%d, 2, v%d" % (vZA, vLANE16), "v_add_u32 v%d, s%d, v%d" % (vZA, sREG, vZA), "v_mov_b32 v%d, s%d" % (vZB, sREG),
                    ("lg", "ds_write_b32 v%d, v%d offset:%d" % (vZA, vZ, ZOFF), "zw"),
                    "v_and_b32 v%d, 0x70, v%d" % (vFO, vLANE16), "v_lshrrev_b32 v%d, 1, v%d" % (vFO, vFO), "s_mov_b32 s%d, 0x%x" % (sD, f2u(SHIFT))], 24, 31, asap=True)
    sc.emit()
    stamp(True)
    MX = [232, 233, 234, 235]; MT = [236, 237, 238, 239]
    zr = [("lg", "ds_read_b128 %s, v%d offset:%d" % (ar(192 + 4 * i), vZB, ZOFF), "zr") for i in range(16)]
    g.emit(zr[:6] + ["v_and_b32 v%d, 0x%x, v%d" % (vL128, 1024 * GG - 128, vL128)])
    g.emit(rowmax(0, MX))
    g.emit(allreduce("v_max_f32", MX, MT, lambda: []))
    for q4 in range(4): e("v_add_f32 v%d, s%d, v%d" % (MX[q4], sD, MX[q4]))
    for q4 in range(4):
        for k in range(4): e("v_sub_f32 v%d, 0, v%d" % (NM(q4) + k, MX[q4]))
    nmc = lambda q4: vr(NM(q4))
    subs = ["v_sub_f32 v%d, v%d, v%d" % (S(0) + k, S(0) + k, MX[k // 8]) for k in range(32)]
    g.emit(("wlg", "kf1"))
    stamp(True)
    sc = Sched(g, qk(1, VF, nmc))
    sc.spread("k", kreads(1, KA, KF, "kf"), 0, 15)
    sc.spread("k", ["v_add_u32 v%d, %d, v%d" % (vKR[u], KB, vKR[u]) for u in range(2)], 16, 20)
    sc.put("b", [("wboth", ["k2", "v0"], "kf"), "s_barrier"], 27, 27, force=True)
    ex, sm_ = smx(0, None, subs)
    sc.softmax("s", ex, sm_, NT, 0, 31)
    sc.emit()
    stamp()
    fl = ["v_cmp_eq_u32 vcc, 0, v%d" % vTAG, "s_cbranch_vccnz L_tagwait", "L_tagok:", ("wvm", "hst"), "s_mov_b64 exec, 1",
          ("vm", "buffer_store_dwordx2 %s, v%d, %s, s%d offen sc1" % (vr(vTAG, 2), vZ, sr(SWS), sOS), "hflag"), "s_mov_b64 exec, -1"]

    NP = opts.get("np", 1); NL = 7 - NP; NE = 2 * (NP - 1)
    def attn_iter(withF, name, first=False, last=False):
        f = 16 if withF else 0
        F = [0, 68 + f]; QK = [f, 68 + 2 * f]; PVs = [32 + f, 100 + 2 * f]
        n = 136 + 2 * f
        fs = fmac(FA, FB) if withF else []
        sc = Sched(g, fs + qk(0, KF, nmc) + pv(0, VF, zero=first) + fs + qk(1, KF, nmc) + pv(1, VF))
        sc.maxlg = opts.get("mlg", 2)
        BG = n - 9
        v0 = vreads(0, VF, "vf0")
        kd = kdma(lambda b: "s_add_u32 m0, s%d, %d" % (sKD, 64 * b), "kl") + ["s_sub_u32 s%d, s%d, s%d" % (sKD, sKSUM, sKD)]
        vd = vdma("s_mov_b32 m0, s%d" % sVD, "vl") + ["s_sub_u32 s%d, s%d, s%d" % (sVD, sVSUM, sVD)]
        def pairs(sid, items, lo, hi):
            m = len(items) // 2
            for k in range(m):
                t = lo + (k * (hi + 1 - lo)) // m
                while sc.load[t] > 0 and t < hi: t += 1
                t = sc.put(sid, items[2 * k], t, hi + 2); sc.put(sid, items[2 * k + 1], t, hi + 2)
        sc.put("b", ("wboth", ["kl", "vl"], "kf1"), BG, BG, force=True); sc.put("b", "s_barrier", BG, BG, force=True); sc.reserve(BG, 4)
        sc.put("w", ("wboth", "p_w1", "vf0") if withF else ("wlg", "vf0"), PVs[0] + 3, PVs[0] + 3, force=True)
        sc.put("w", ("wboth", "h1", ["fa1", "kf0"]) if withF else ("wlg", "kf0"), F[1] - 1, F[1] - 1, force=True)
        sc.put("w", ("wboth", "w0", "vf1") if (withF or last) else ("wlg", "vf1"), PVs[1] + 3, PVs[1] + 3, force=True)
        if withF:
            sc.put("w", ("wboth", ["h0"], "fa0"), n - 2, n - 2, force=True)
            sc.put("w", "s_cmp_lt_u32 s%d, %d" % (sCNT, NL), n - 1, n - 1, force=True)
            sc.put("w", "s_cbranch_scc1 L_attn", n - 1, n - 1, force=True)
            sc.reserve(n - 1, 4)
            sc.spread("h", hload(FB, "h1"), 16, 23)
            sc.spread("d", w2dma(0, "w0") + kd + vd, 24, F[1] - 4)
            sc.spread("h", hload(FB, "h0"), F[1] + 16, F[1] + 23)
            sc.spread("d", w2dma(1, "w1") + [("vm", "buffer_load_dword v%d, v%d, %s, s%d offen" % (vDUM, vL128, sr(SWO), sOPF), "pf2"), "s_add_u32 s%d, s%d, %d" % (sOPF, sOPF, 1024 * GG),
                            "s_add_u32 s%d, s%d, 1" % (sCNT, sCNT), ["s_cmp_eq_u32 s%d, %d" % (sCNT, NL - 1), "s_cselect_b32 s%d, 0, s%d" % (SK + 2, SK + 2)]], F[1] + 24, F[1] + 54)
            sc.maxlg = 1
            sc.spread("fa", freads(1, FA, "fa1"), PVs[0] + 4, F[1] - 10)
        else:
            if first: sc.put("h", fl, 0, 0, force=True)
            pf = [] if first else [("vm", "buffer_load_dword v%d, v%d, %s, s%d offen" % (vDUM, vL128, sr(SWO), sOPF), "pf2"), "s_add_u32 s%d, s%d, %d" % (sOPF, sOPF, 1024 * GG)]
            if last:
                sc.put("w", ("wboth", ["h0"], "fa0"), n - 1, n - 1, force=True)
                HPG = opts.get("hpg", 70 if first else 2)
                HPD = 30 if first else 60
                sc.put("h", ("vm", poll, "hpoll"), HPG, HPG + 4)
                sc.spread("d", kd + vd + w2dma(0, "w0"), 4, 64)
                sc.put("h", [("wvm", "hpoll"), cmpf, "s_cbranch_vccnz L_hwait", "L_hok:"], HPG + HPD, HPG + HPD, force=True)
                sc.spread("h", hload(FB, "h0"), max(HPG + HPD + 1, 66), n - 1, asap=True)
                sc.spread("d", w2dma(1, "w1") + pf, sc.pos["h"][0], n - 1, asap=True)
                assert HPG + HPD < PVs[1] + 4
            else: sc.spread("d", kd + vd + pf, 4, 64)
        sc.maxlg = 2
        pairs("v", v0 if first else v0[8:], 0, PVs[0] - 6)
        pairs("v", vreads(1, VF, "vf1"), PVs[0] + 36, PVs[1] - 6)
        sc.maxlg = 1
        sc.spread("k", kreads(0, 0, KF, "kf0"), QK[0] + 32, F[1] - 10)
        sc.spread("k", kreads(1, 0, KF, "kf1"), QK[1] + 32, BG - 9)
        if withF or last: sc.spread("fa", freads(0, FA, "fa0"), PVs[1] + 4, n - 11)
        sc.spread("v", ["v_add_u32 v%d, s%d, v%d" % (vVR[u][k], sVR, vVR[u][k]) for u in range(2) for k in range(2)] + ["s_sub_u32 s%d, 0, s%d" % (sVR, sVR)], PVs[1], BG - 1)
        sc.spread("k", ["v_add_u32 v%d, s%d, v%d" % (vKR[u], sKR, vKR[u]) for u in range(2)] + ["s_sub_u32 s%d, 0, s%d" % (sKR, sKR)], BG - 8, n - 3)
        sc.maxlg = 2
        sc.spread("v", v0[:8], BG + 1, n - 2)
        if first: pairs("z", zr[6:], 30, 60)
        for half in range(2):
            p = (1 + half) % 2
            ex, sm_ = smx(p, "%s%d" % (name, half))
            lo, hi = (0, QK[1] - 1 - opts.get("smb", 8 if withF else 0)) if half == 0 else (F[1], n - 2)
            gb = sc.softmax("s", ex, sm_, NT, lo, hi)
            assert QK[half] + 31 <= gb < (QK[1] if half == 0 else n), (gb, QK)
        return sc
    g.lg = []
    for i in range(NP):
        sc = attn_iter(False, "p%d" % i, first=(i == 0), last=(i == NP - 1))
        ov = sc.emit()
        if opts.get("v"): print("attn0 over", ov)
    stamp()
    e(".p2align 3")
    g.lab("L_attn")
    def prev(l): return ["p_" + x for x in l]
    save = g.L
    outs = []
    seed_vm, seed_lg = prev(g.vm), list(g.lg)
    for it in range(3):
        g.L = []; g.vm = list(seed_vm); g.lg = list(seed_lg)
        n0, l0 = len(g.vm), len(g.lg)
        sc = attn_iter(True, "l")
        ov = sc.emit()
        outs.append(g.L)
        seed_vm, seed_lg = prev(g.vm[n0:]), list(g.lg[l0:])
    if opts.get("v"): print("attn loads", sc.load, "over", ov, "sum", sum(sc.load))
    merged = []
    for lines in zip(*outs):
        if len(set(lines)) == 1: merged.append(lines[0]); continue
        assert all("s_waitcnt" in x for x in lines), lines
        parts = []
        for c in ("vmcnt", "lgkmcnt"):
            v = [re.search(c + r"\((\d+)\)", x) for x in lines]
            if v[0]: parts.append("%s(%d)" % (c, min(int(m.group(1)) for m in v)))
        if opts.get("v"): print("merge", lines)
        merged.append("    s_waitcnt " + " ".join(parts))
    g.L = save + merged
    g.vm = seed_vm; g.lg = seed_lg
    stamp()
    vRL = [48, 50, 52, 54]; vOW = [211, 212]; vBR2 = [200, 201]
    ACCA, ACCB, OP = 128, 64, 64
    FB2 = [16, 20, 24, 28]
    mf = fmac(FA, FB) + pv(0, VF) + fmac(0, FB2) + pv(1, KF)
    M0 = len(mf); P15 = M0 - 36
    def bB(n):
        s = n % 16
        return (lambda q4: vr(16 * (s - 12) + 4 * q4)) if s >= 12 else (lambda q4: ar(16 * s + 4 * q4))
    for n in range(32):
        mf += macro_mf(n, ACCA if n < 16 else ACCB, (lambda q4, n=n: vr(OP + 16 * n + 4 * q4)) if n < 4 else bB(n), n % 16 == 0)
    sc = Sched(g, mf)
    MG = lambda n: M0 + GP * n
    ardB = lambda n: areads(n, BSLOT[n % 5], "r%d" % n, vTW, 2048)
    v0 = vreads(0, VF, "v14b")
    sc.spread("h", hload(FB2, "h27"), 0, 9)
    sc.maxlg = 2
    sc.spread("v", v0[8:], 0, 11)
    sc.put("w", ("wboth", "p_w1", "v14b"), 19, 19, force=True)
    sc.spread("fr", freads(1, 0, "fa"), 20, 34)
    sc.put("w", ("wboth", "h27", "fa"), 51, 51, force=True)
    sc.spread("v", vreads(1, KF, "v15"), 30, 60)
    sc.maxlg = 1
    sc.put("w", [("wlg", "v15"), "s_barrier"], P15 + 3, P15 + 3, force=True)
    def bdma(n):
        pre = ["s_add_u32 m0, s%d, %d" % (sREG, BSLOT[n % 5])]
        if n == 0: pre += ["s_mul_i32 s%d, s%d, %d" % (sOM, sW, 128 * 1024 + 256)]
        else:
            pre += ["s_add_u32 s%d, s%d, %d" % (sOM, sOM, 32 * 1024 + (128 if n == 16 else 0))]
            if n % 4 == 0: pre += ["s_and_b32 s%d, s%d, 0x7ffff" % (sOM, sOM)]
        return pre + [("vm", "buffer_load_dwordx4 v%d, %s, s%d offen offset:%d lds" % (vWO[b], sr(SWO), sOM, b * 1024), "m%d" % n) for b in range(4)]
    sc.spread("dma", ["v_add_u32 v%d, %d, v%d" % (vWO[2 + k], 2 * (8192 - 1024), vWO[k]) for k in range(2)] + bdma(0) + bdma(1) + bdma(2) + bdma(3), opts.get("bd0", 24), P15 + 14, slack=3)
    sc.spread("dma", bdma(4), P15 + 17, M0 - 4, slack=2)
    sc.put("rd", ("wvm", "m0"), M0 - 16, M0 - 16, force=True)
    sc.spread("rd", ardB(0), M0 - 15, M0 - 6)
    sc.put("w", ("wboth", "m1", "r0"), M0 - 1, M0 - 1, force=True)
    ex, sm_ = smx(1, "t")
    sc.softmax("s", ex, sm_, NT, 0, P15 - 2)
    lt = ["s_lshl_b32 s%d, s%d, 8" % (sBO, sW)] + ["v_add_u32 v%d, s%d, v%d" % (vOW[k], sBO, vB[k]) for k in range(2)]
    sc.spread("s", lt, P15, P15 + 4, asap=True)
    lt = ["v_rcp_f32 v%d, v%d" % (vRL[q], LAC[q]) for q in range(4)] + bupd(vBR2)
    sc.spread("s", lt, P15 + 7, P15 + 14, asap=True)
    TC = MG(3) + 4
    for n in range(27): res_dma(sc, MG(n), 1)
    for n in range(31):
        g0 = MG(n)
        wv = "m%d" % (n + 2) if n + 2 < 32 else None
        sc.put("w", ("wboth", wv, "r%d" % (n + 1)) if wv else ("wlg", "r%d" % (n + 1)), g0 + GP - 1, g0 + GP - 1, force=True)
        b = breads(bB(n + 1), vBR2, 64 * ((n + 1) % 4), "r%d" % (n + 1)) if 4 <= n + 1 < 20 else None
        if n + 1 == 4:
            sc.maxlg = 2; sc.spread("rb", b, TC + 1, TC + 3, asap=True); sc.maxlg = 1; b = None
        place_reads(sc, ardB(n + 1), b, g0)
        if (n + 2) % 4 == 0 and 4 < n + 2 < 20: sc.spread("rd", bupd(vBR2), g0 + 6, g0 + GP - 1, asap=True)
    for n in range(27): place_dma(sc, bdma(n + 5), MG(n))
    if opts.get("cpk", 1):
        pend = []
        for gi in range(17):
            dt, q4 = gi // 4, gi % 4
            if gi < 4: lo = max(P15 + 16 + 5 * gi, sc.pos["s"][0]); hi = P15 + 20 + 5 * gi
            else: lo = MG(dt - 1) + 4 * q4; hi = lo + 3
            t = 32 + 8 * (gi % 2)
            o = OP + 4 * gi
            rd_ = ["v_accvgpr_read_b32 v%d, a%d" % (t + k, 8 * gi + k) for k in range(8)] if gi < 16 else []
            for k, it in enumerate(pend[:4]):
                if q4 == 0: sc.put("s", it, lo + k // 2, lo + k // 2, force=True)
                else: sc.put("s", it, lo, hi)
            if pend: sc.put("ow", pend[4], sc.pos["s"][0] + 1, force=True)
            sc.caps[hi] = 1000
            for it in rd_: sc.put("s", it, lo, hi)
            if gi < 16:
                for k in range(4): sc.put("s", "v_pk_mul_f32 %s, %s, %s op_sel_hi:[1,0]" % (vr(t + 2 * k, 2), vr(t + 2 * k, 2), vr(vRL[q4], 2)), hi, hi, force=True)
            sc.caps[hi] = 8
            pend = ["v_cvt_pk_bf16_f32 v%d, v%d, v%d" % (o + k, t + 2 * k, t + 2 * k + 1) for k in range(4)]
            pend.append(("lg", "ds_write_b128 v%d, %s offset:%d" % (vOW[q4 // 2], vr(o), dt * 64 + (q4 % 2) * RS), "ow"))
    else:
      for dt in range(4):
        cv = []
        for q4 in range(4):
            a0 = 8 * (4 * dt + q4)
            t = 32 + 8 * (q4 % 2)
            o = OP + 16 * dt + 4 * q4
            cv = cv + ["v_accvgpr_read_b32 v%d, a%d" % (t + k, a0 + k) for k in range(8)]
            cv += ["v_mul_f32 v%d, v%d, v%d" % (t + k, t + k, vRL[q4]) for k in range(8)]
            cv += ["v_cvt_pk_bf16_f32 v%d, v%d, v%d" % (o + k, t + 2 * k, t + 2 * k + 1) for k in range(4)]
            cv.append(("lg", "ds_write_b128 v%d, %s offset:%d" % (vOW[q4 // 2], vr(o), dt * 64 + (q4 % 2) * RS), "ow"))
        sc.pour("s", cv, P15 + 14 if dt == 0 else MG(dt - 1), MG(dt) - 1, side="ow")
    sc.put("ow", [("wlg", "ow"), "s_barrier"], TC, TC, force=True)
    vXO, vBO, OLO2, OHI2, vZ2, vFL2, vFO2 = 196, 197, 198, 199, 210, 214, 213
    vRA = [218, 219, 220]
    XV, BV = 132, 140
    def scvt(ps):
        return ["v_cvt_pk_bf16_f32 v%d, v%d, v%d" % (b + k, b + 2 * k, b + 2 * k + 1) for b in range((ACCB if ps else ACCA), (ACCB if ps else ACCA) + 64, 8) for k in range(4)]
    def sst(ps):
        return [("vm", "buffer_store_dwordx4 %s, v%d, %s, s%d offen offset:%d sc1" % (vr((ACCB if ps else ACCA) + 8 * i), vLANE16, sr(SWS),
                 sOS if (i % 4) < 2 else sOS2, ((2 * (i % 4) + i // 4) % 4) * 1024), "s%d" % ps) for i in range(8)]
    fp = scvt(0)
    fp += ["v_bfe_u32 v%d, v%d, 8, 1" % (vBO, vLANE16), "v_lshrrev_b32 v%d, 9, v%d" % (vXO, vLANE16), "v_lshl_add_u32 v%d, v%d, 1, v%d" % (vBO, vBO, vXO),
           "v_lshlrev_b32 v%d, 4, v%d" % (vBO, vBO), "v_and_b32 v%d, 0xf0, v%d" % (vXO, vLANE16), "v_lshl_add_u32 v%d, v%d, 6, v%d" % (vXO, vXO, vBO),
           "v_mov_b32 v%d, 0x3f80" % OLO2, "v_mov_b32 v%d, 0x3f800000" % OHI2, "v_mov_b32 v%d, 0" % vZ2, "v_add_u32 v%d, s%d, v%d" % (vRA[0], sREG, vLANE16),
           "v_and_b32 v%d, 0x70, v%d" % (vFO2, vLANE16), "v_lshrrev_b32 v%d, 1, v%d" % (vFO2, vFO2)]
    fs_ = ["s_lshl_b32 s%d, s%d, 7" % (sB2O, sJ),
           "s_lshl_b32 s%d, s%d, 14" % (sA, sW), "s_lshl_b32 s%d, s%d, 16" % (sXO, sRC), "s_add_u32 s%d, s%d, s%d" % (sXO, sXO, sA),
           "s_add_u32 s%d, s%d, s%d" % (sXO, sXO, sB2O),
           "s_lshl_b32 s%d, s%d, 3" % (sPOLL, sRC), "s_add_u32 s%d, s%d, s%d" % (sPOLL, sPOLL, sJ), "s_lshl_b32 s%d, s%d, 16" % (sOPF, sPOLL),
           "s_lshl_b32 s%d, s%d, 7" % (sPOLL, sPOLL), "s_add_u32 s%d, s%d, 0x%x" % (sPOLL, sPOLL, F_OFF),
           "s_lshl_b32 s%d, s%d, 11" % (sA, sW), "s_add_u32 s%d, s%d, s%d" % (sOPF, sOPF, sA), "s_add_u32 s%d, s%d, 0x%x" % (sOPF, sOPF, S_OFF),
           "s_mov_b32 s%d, 0x%x" % (sD, f2u(-math.log2(math.e))),
           "s_lshl_b32 s%d, s%d, 2" % (sA, sR), "s_add_u32 s%d, s%d, s%d" % (sA, sA, sW), "s_lshl_b32 s%d, s%d, 4" % (sB_, sA), "s_lshl_b32 s%d, s%d, 5" % (sC, sA),
           "s_add_u32 s%d, s%d, s%d" % (sB_, sB_, sG), "s_lshl_b32 s%d, s%d, 13" % (sB_, sB_), "s_add_u32 s%d, s%d, 0x%x" % (sOS, sB_, S_OFF), "s_add_u32 s%d, s%d, 4096" % (sOS2, sOS),
           "s_add_u32 s%d, s%d, s%d" % (sC, sC, sG), "s_lshl_b32 s%d, s%d, 3" % (sC, sC), "s_add_u32 s%d, s%d, 0x%x" % (sC, sC, F_OFF),
           "s_lshl_b32 s%d, s%d, 12" % (sB_, sW), "s_add_u32 s%d, s%d, %d" % (sB_, sB_, BSLOT[2]), ["s_cmp_eq_u32 s%d, 3" % sW, "s_cselect_b32 s%d, %d, s%d" % (sB_, BSLOT[0], sB_)],
           "v_add_u32 v%d, s%d, v%d" % (vRA[1], sB_, vLANE16), "v_add_u32 v%d, %d, v%d" % (vRA[2], 2 * RS, vRA[1]), "s_mov_b32 s%d, 0" % sKD]
    sc.spread("fs", fs_, MG(5), MG(24), asap=True)
    sc.spread("st", fp[32:], MG(12), MG(16), asap=True)
    sc.spread("st", fp[:32], MG(16) + 8, MG(25), asap=True)
    def sflag(ps):
        return [("wvm", "s%d" % ps), "s_mov_b64 exec, 1",
                ("vm", "buffer_store_dwordx2 %s, v%d, %s, s%d offen offset:%d sc1" % (vr(vTAG, 2), vZ2, sr(SWS), sC, 128 * ps), "sflag%d" % ps), "s_mov_b64 exec, -1"]
    poll2 = "buffer_load_dwordx2 %s, v%d, %s, s%d offen sc1" % (vr(vFL2, 2), vFO2, sr(SWS), sPOLL)
    SV_, SS, FBU, XU = 128, 16, 64, 80
    sDONE, sNEW = sKD, sVD
    SEA = opts.get("sea", 0)
    SA0, SA1 = opts.get("sa0", 19 if SEA else 27), opts.get("sa1", 23 if SEA else 31)
    xl = []
    for t in range(2):
        xl.append(("vm", "buffer_load_dwordx4 %s, v%d, %s, s%d offen offset:%d" % (ar(4 * t), vXO, sr(SX), sXO, 64 * t), "xf"))
        xl.append(("vm", "buffer_load_dwordx4 %s, v%d, %s, s%d offen offset:%d" % (ar(8 + 4 * t), vBO, sr(SB2), sB2O, 64 * t), "xf"))
    sc.spread("st", xl, MG(SA0) - 3, MG(SA0) + 4, slack=3)
    sc.spread("st", sst(0), MG(SA0) + 6, MG(SA1), slack=4)
    sc.spread("st", ["s_add_u32 s%d, s%d, 0x10000" % (sOS, sOS), "s_add_u32 s%d, s%d, 0x10000" % (sOS2, sOS2)], MG(SA1), sc.n - 1, asap=True)
    if SEA:
        SF0, SP0, SL0 = opts.get("sf0", 26), opts.get("sp0", 28), opts.get("sl0", 30)
        sc.put("fl", sflag(0), MG(SF0) + 12, MG(SF0) + 12, force=True)
        sc.put("fl", ("vm", poll2, "spollA"), MG(SP0) + 10)
        sc.put("fl", [("wvm", "spollA"), "v_cmp_eq_u64 vcc, %s, %s" % (vr(vFL2, 2), vr(vTAG, 2)), "s_nop 1", "s_and_b32 s%d, vcc_lo, 0xff" % sDONE], MG(SL0), MG(SL0), force=True)
        el = []
        for gp in range(8):
            sx = [sA, sB_][gp % 2]
            el += [["s_add_u32 s%d, s%d, %d" % (sx, sOPF, 8192 * gp), "s_bitcmp1_b32 s%d, %d" % (sDONE, gp), "s_cselect_b32 s%d, s%d, 0x40000000" % (sx, sx)]]
            el += [("vm", "buffer_load_dwordx4 %s, v%d, %s, s%d offen offset:%d sc1" % (vr(SV_ + 8 * gp + 4 * jj), vLANE16, sr(SWS), sx, jj * 1024), "sl0") for jj in range(2)]
        sc.spread("fl", el, MG(SL0) + 1, sc.n - 1, slack=1)
    FX = [BSLOT[2], BSLOT[3], BSLOT[4], BSLOT[0]]
    for T in range(4):
        fw = [("lg", "ds_write_b128 v%d, %s offset:%d" % (vRA[0], ar(192 + 16 * T + 4 * q4), FX[T] + q4 * 1024), "fw") for q4 in range(4)]
        if NE == 0 and not opts.get("fwl", 1): sc.spread("fw", fw, MG(27 + T) + 8, MG(27 + T) + 15, slack=1)
    ov = sc.emit({M0 - 1: stamp, MG(4) - 1: stamp, MG(16) - 1: stamp})
    if opts.get("v"): print("tail/B loads", sc.load[:MG(5)], "overflow", ov)
    stamp()
    cv1 = scvt(1); st1 = sst(1)
    EL = opts.get("el", 0)
    if EL: e(poll2); g.vm.append("spollA")
    for i in range(8):
        g.emit(cv1[4 * i:4 * i + 4]); g.emit(st1[i])
        if NE == 0 and opts.get("fwl", 1) == 2:
            for q4 in range(2): e("ds_write_b128 v%d, %s offset:%d" % (vRA[0], ar(192 + 8 * i + 4 * q4), FX[i // 2] + ((i % 2) * 2 + q4) * 1024))
    if NE == 0 and opts.get("fwl", 1) == 1:
        for T in range(4):
            for q4 in range(4): e("ds_write_b128 v%d, %s offset:%d" % (vRA[0], ar(192 + 16 * T + 4 * q4), FX[T] + q4 * 1024))
    def fxread():
        e("s_waitcnt lgkmcnt(0)")
        e("s_barrier")
        for rho in range(4):
            for q4 in range(4):
                e("ds_read_b128 %s, v%d offset:%d" % (vr(16 * rho + 4 * q4), vRA[1 + rho // 2], (rho % 2) * RS + q4 * 1024))
    def silu_a():
        for rho in range(4):
            e("s_waitcnt lgkmcnt(%d)" % (12 - 4 * rho))
            for k in range(16): e("v_add_f32 v%d, v%d, v%d" % (FBU + k, FBU + k, 16 * rho + k))
    def silu_b():
        for k in range(16): e("v_mul_f32 v%d, s%d, v%d" % (k, sD, FBU + k))
        for k in range(16): e("v_exp_f32 v%d, v%d" % (k, k))
        for k in range(16): e("v_add_f32 v%d, 1.0, v%d" % (k, k))
        for k in range(16): e("v_rcp_f32 v%d, v%d" % (k, k))
        for k in range(16): e("v_mul_f32 v%d, v%d, v%d" % (k, k, FBU + k))
    FL8 = opts.get("fl8", 1)
    if NE == 0 and not FL8: fxread()
    if not SEA: g.emit(sflag(0))
    else: g.emit(("wvm", "xf"))
    if EL:
        g.emit(("wvm", "spollA"))
        e("v_cmp_eq_u64 vcc, %s, %s" % (vr(vFL2, 2), vr(vTAG, 2)))
        e("s_nop 1")
        e("s_and_b32 s%d, vcc_lo, 0xff" % sDONE)
        for gp in range(8):
            e("s_add_u32 s%d, s%d, %d" % (sA, sOPF, 8192 * gp))
            e("s_bitcmp1_b32 s%d, %d" % (sDONE, gp))
            e("s_cselect_b32 s%d, s%d, 0x40000000" % (sA, sA))
            for jj in range(2):
                g.emit(("vm", "buffer_load_dwordx4 %s, v%d, %s, s%d offen offset:%d sc1" % (vr(SV_ + 8 * gp + 4 * jj), vLANE16, sr(SWS), sA, jj * 1024), "sl0"))
    XV, BV = 96, 104
    for k in range(16): e("v_accvgpr_read_b32 v%d, a%d" % (XV + k, k))
    for b in (XV, XV + 4, BV, BV + 4): g.emit(swaps(b))
    for k in range(8):
        e("v_lshlrev_b32 v%d, 16, v%d" % (XU + 2 * k, XV + k)); e("v_and_b32 v%d, 0xffff0000, v%d" % (XU + 1 + 2 * k, XV + k))
    for k in range(8):
        e("v_lshlrev_b32 v%d, 16, v%d" % (FBU + 2 * k, BV + k)); e("v_and_b32 v%d, 0xffff0000, v%d" % (FBU + 1 + 2 * k, BV + k))
    if NE == 0 and not FL8: silu_a()
    stamp(True)
    g.emit(sflag(1))
    stamp(True)
    assert NE <= 4
    for n in range(NE):
        e("s_add_u32 m0, s%d, %d" % (sREG, BSLOT[n]))
        for q4 in range(4):
            g.emit(("vm", "buffer_load_dwordx4 %s, v%d, %s, s%d offen offset:%d sc1" % (ar(16 + 16 * n + 4 * q4), vLANE16, sr(SWS), sHL, 1024 * q4), "e%d" % n))
        for b in range(4):
            g.emit(("vm", "buffer_load_dwordx4 v%d, %s, s%d offen offset:%d lds" % (vWO[b], sr(SW2), sOW2, b * 1024), "e%d" % n))
        e("s_add_u32 s%d, s%d, 4096" % (sHL, sHL)); e("s_add_u32 s%d, s%d, 0x8000" % (sOW2, sOW2))
    e(poll2); g.vm.append("spoll0")
    if NE == 0:
        if FL8: fxread(); silu_a()
        silu_b()
    else:
        g.lg = []
        ard = lambda n: areads(n, BSLOT[n], "er%d" % n, vTW, 2048)
        g.emit(("wvm", "e0")); g.emit(ard(0)); g.emit(("wboth", "e1", "er0"))
        mf = []
        for n in range(NE):
            mf += [mfma16(ar(192 + 16 * q4 + 4 * mt), vr(AF + 16 * (n % 2) + 4 * mt), ar(16 + 16 * n + 4 * q4), ar(192 + 16 * q4 + 4 * mt)) for mt in range(4) for q4 in range(4)]
        sc = Sched(g, mf)
        for n in range(NE - 1):
            sc.spread("rd", ard(n + 1), GP * n, GP * n + 9, asap=True)
            sc.put("w", ("wboth", "e%d" % min(n + 2, NE - 1), "er%d" % (n + 1)), GP * n + 15, GP * n + 15, force=True)
        sc.emit()
        e("s_nop 7")
        for T in range(4):
            for q4 in range(4): e("ds_write_b128 v%d, %s offset:%d" % (vRA[0], ar(192 + 16 * T + 4 * q4), FX[T] + q4 * 1024))
    e("s_cmp_eq_u32 s%d, 0xff" % sDONE)
    e("s_cbranch_scc1 L_pdone")
    g.emit(("wvm", "spoll0"))
    e("s_branch L_pchk")
    g.lab("L_poll")
    e("s_sleep 2")
    e(poll2)
    e("s_add_u32 s%d, s%d, 1" % (sSPIN, sSPIN))
    e("s_cmp_gt_u32 s%d, 0x%x" % (sSPIN, 1 << 20))
    e("s_cbranch_scc1 L_pdone")
    e("s_waitcnt vmcnt(0)")
    g.lab("L_pchk")
    e("v_cmp_eq_u64 vcc, %s, %s" % (vr(vFL2, 2), vr(vTAG, 2)))
    e("s_nop 1")
    e("s_andn2_b32 s%d, vcc_lo, s%d" % (sNEW, sDONE))
    e("s_and_b32 s%d, s%d, 0xff" % (sNEW, sNEW))
    e("s_cbranch_scc0 L_poll")
    e("s_or_b32 s%d, s%d, s%d" % (sDONE, sDONE, sNEW))
    for gp in range(8):
        e("s_bitcmp1_b32 s%d, %d" % (sNEW, gp))
        e("s_cbranch_scc0 L_sk%d" % gp)
        e("s_add_u32 s%d, s%d, %d" % (sA, sOPF, 8192 * gp))
        for jj in range(2):
            e("buffer_load_dwordx4 %s, v%d, %s, s%d offen offset:%d sc1" % (vr(SV_ + 8 * gp + 4 * jj), vLANE16, sr(SWS), sA, jj * 1024))
        g.lab("L_sk%d" % gp)
    e("s_cmp_lg_u32 s%d, 0xff" % sDONE)
    e("s_cbranch_scc1 L_poll")
    g.lab("L_pdone")
    stamp(True)
    if NE: fxread(); silu_a(); silu_b()
    e("s_waitcnt vmcnt(0)")
    for gp in range(8):
        for k in range(8):
            src = SV_ + 8 * gp + k
            if gp == 0:
                e("v_lshlrev_b32 v%d, 16, v%d" % (SS + 2 * k, src)); e("v_and_b32 v%d, 0xffff0000, v%d" % (SS + 1 + 2 * k, src))
            else:
                e("v_dot2c_f32_bf16 v%d, v%d, v%d" % (SS + 2 * k, src, OLO2)); e("v_dot2c_f32_bf16 v%d, v%d, v%d" % (SS + 1 + 2 * k, src, OHI2))
    stamp(True)
    for k in range(16): e("v_fma_f32 v%d, v%d, v%d, v%d" % (k, k, SS + k, XU + k))
    for k in range(8): e("v_cvt_pk_bf16_f32 v%d, v%d, v%d" % (48 + k, 2 * k, 2 * k + 1))
    g.emit(swaps(48)); g.emit(swaps(52))
    for t in range(2):
        e("buffer_store_dwordx4 %s, v%d, %s, s%d offen offset:%d" % (vr(48 + 4 * t), vXO, sr(SOUT), sXO, 64 * t))
    if stamps:
        e("s_waitcnt vmcnt(0)")
        stamp()
        e("s_memrealtime s[90:91]"); e("s_waitcnt lgkmcnt(0)"); e("v_writelane_b32 v%d, s90, 63" % vST)
        e("s_lshl_b32 s%d, s2, 2" % sA)
        e("s_add_u32 s%d, s%d, s%d" % (sA, sA, sW))
        e("s_lshl_b32 s%d, s%d, 8" % (sA, sA))
        e("s_add_u32 s%d, s%d, 0x%x" % (sA, sA, F_OFF + 0x20000))
        e("v_lshrrev_b32 v0, 2, v%d" % vLANE16)
        e("buffer_store_dword v%d, v0, %s, s%d offen" % (vST, sr(SWS), sA))
    g.lab("L_end")
    e("s_endpgm")
    g.lab("L_codeend")
    g.lab("L_mktag")
    e("s_memrealtime s[%d:%d]" % (sT0, sT0 + 1))
    e("s_waitcnt lgkmcnt(0)")
    e("s_or_b32 s%d, s%d, 1" % (sA, sT0))
    e("v_mov_b32 v120, s%d" % sA)
    e("v_mov_b32 v121, s%d" % (sT0 + 1))
    e("v_mov_b32 v122, 0")
    e("global_store_dwordx2 v122, v[120:121], s[%d:%d] sc1" % (sDBG, sDBG + 1))
    e("s_branch L_notag")
    def spin(lab, back, load, cmp):
        g.lab(lab)
        e("s_sleep 1")
        for x in load: e(x)
        e("s_add_u32 s%d, s%d, 1" % (sSPIN, sSPIN))
        e("s_cmp_gt_u32 s%d, 0x%x" % (sSPIN, 1 << 20))
        e("s_cbranch_scc1 %s" % back)
        e("s_waitcnt vmcnt(0)")
        e(cmp)
        e("s_cbranch_vccnz %s" % lab)
        e("s_branch %s" % back)
    spin("L_tagwait", "L_tagok", ["global_load_dwordx2 %s, v%d, s[%d:%d] sc1" % (vr(vTAG, 2), vZ, sDBG, sDBG + 1)], "v_cmp_eq_u32 vcc, 0, v%d" % vTAG)
    spin("L_hwait", "L_hok", [poll], cmpf)
    for n, p in rare_sites.items():
        g.lab("L_rare%s" % n)
        e("s_call_b64 s[%d:%d], L_resc%d" % (sRET, sRET + 1, p))
        e("s_branch L_back%s" % n)
    for p in range(2):
        g.lab("L_resc%d" % p)
        e("s_nop 7"); e("s_nop 3")
        D = [ONES + k for k in range(4)]; FCT = [vT + 2, vT + 3, vT + 4, vT + 5]
        g.emit(rowmax(p, D))
        g.emit(allreduce("v_max_f32", D, FCT, lambda: []))
        for q in range(4): e("v_add_f32 v%d, 0x%x, v%d" % (D[q], f2u(SHIFT), D[q]))
        for q in range(4): e("v_max_f32 v%d, 0, v%d" % (D[q], D[q]))
        for q in range(4): e("v_ceil_f32 v%d, v%d" % (D[q], D[q]))
        for q in range(4): e("v_exp_f32 v%d, -v%d" % (FCT[q], D[q]))
        for q in range(4):
            for k in range(8):
                e("v_sub_f32 v%d, v%d, v%d" % (S(0) + 8 * q + k, S(0) + 8 * q + k, D[q]))
                e("v_sub_f32 v%d, v%d, v%d" % (S(1) + 8 * q + k, S(1) + 8 * q + k, D[q]))
            for k in range(4):
                e("v_sub_f32 v%d, v%d, v%d" % (NM(q) + k, NM(q) + k, D[q]))
                e("v_mul_f32 v%d, v%d, v%d" % (LAC[q] + k, LAC[q] + k, FCT[q]))
        for f in range(8):
            for q in range(4):
                a0 = OA(f, q)
                for k in range(4): e("v_accvgpr_read_b32 v%d, a%d" % (D[k], a0 + k))
                for k in range(4): e("v_mul_f32 v%d, v%d, v%d" % (D[k], D[k], FCT[q]))
                for k in range(4): e("v_accvgpr_write_b32 a%d, v%d" % (a0 + k, D[k]))
        for q in range(4):
            for k in range(4):
                r = P(1 - p, q) + k
                e("v_lshlrev_b32 v%d, 16, v%d" % (vT, r)); e("v_and_b32 v%d, 0xffff0000, v%d" % (vT + 1, r))
                e("v_mul_f32 v%d, v%d, v%d" % (vT, vT, FCT[q])); e("v_mul_f32 v%d, v%d, v%d" % (vT + 1, vT + 1, FCT[q]))
                e("v_cvt_pk_bf16_f32 v%d, v%d, v%d" % (r, vT, vT + 1))
        for k in range(4): e("v_mov_b32 v%d, 0x3f803f80" % (ONES + k))
        for x in sm_flat(p): e(x)
        e("s_nop 1")
        e("s_setpc_b64 s[%d:%d]" % (sRET, sRET + 1))
    g.L += ['.section .rodata,"a"', ".p2align 6", ".amdhsa_kernel " + KNAME,
            "  .amdhsa_next_free_vgpr 512", "  .amdhsa_next_free_sgpr 102", "  .amdhsa_accum_offset 256",
            "  .amdhsa_group_segment_fixed_size 0", "  .amdhsa_kernarg_size 104", "  .amdhsa_user_sgpr_count 2",
            "  .amdhsa_user_sgpr_kernarg_segment_ptr 1", "  .amdhsa_system_sgpr_workgroup_id_x 1", ".end_amdhsa_kernel"]
    return "\n".join(g.L) + "\n"

if __name__ == "__main__":
    opts = {}
    out = "recurrent_scan__sliding_block_cached__dense_activation_squared_relu__prompt.s"
    for a in sys.argv[1:]:
        if a.startswith("-o"): out = a[2:]
        elif "=" in a:
            k, v = a.split("="); opts[k] = int(v)
        else: opts[a] = True
    open(out, "w").write(gen(opts))
```

```python
import sys, struct, math, re

KNAME = "recurrent_scan__sliding_block_cached__dense_activation_squared_relu__prompt_kernel"
RS = 40960
XROW = 1040
RSL = [20480, 24576, 28672, 32768, 36864]
def aslot(n): return RSL[(n - 43) % 5]
K0S, KA, VA, KB, VB = 16640, 20992, 25344, 29440, 33792
BSLOT = [16640, 20736, 24832, 28928, 33024]
S_OFF = 8 << 20
F_OFF = 24 << 20
HF_OFF = F_OFF + 65536
WS_SIZE = 25 << 20

def f2u(x): return struct.unpack("<I", struct.pack("<f", x))[0]

def cls_cost(it):
    if isinstance(it, list):
        cc = [cls_cost(x) for x in it]
        return (0 if all(x[0] == 0 for x in cc) else 3, sum(x[1] for x in cc))
    if isinstance(it, tuple):
        if it[0] == "vm": return (1, 8)
        if it[0] == "lg": return (1, 4)
        return (0, 4)
    s = it.strip()
    if s.endswith(":"): return (3, 0)
    m = s.split()[0]
    if m in ("v_exp_f32", "v_rcp_f32", "v_sqrt_f32", "v_rsq_f32") or m.startswith("v_pk_"): return (2, 8)
    if m.startswith("v_"): return (2, 4)
    if m == "s_nop": return (2, 4 * (int(s.split()[1]) + 1))
    if m in ("s_waitcnt", "s_barrier") or m.startswith("s_cbranch"): return (3, 4)
    return (0, 4)

class Sched:
    def __init__(self, g, mf, cap=None):
        self.g = g; self.mf = mf; self.n = len(mf)
        self.base = [8 if "16x16" in m else 24 for m in mf]
        self.caps = list(self.base) if cap is None else [cap] * self.n
        self.slots = [[] for _ in mf]; self.load = [0] * self.n; self.nvm = [0] * self.n; self.nlg = [0] * self.n
        self.nsa = [0] * self.n; self.resv = [0] * self.n
        self.pos = {}; self.seq = 0; self.maxlg = 1
    def reserve(self, gap, c): self.load[gap] += c; self.resv[gap] += c
    def put(self, sid, it, lo, hi=None, force=False, slack=None):
        if hi is None: hi = self.n - 1
        c, cost = cls_cost(it)
        isvm = isinstance(it, tuple) and it[0] == "vm"
        islg = isinstance(it, tuple) and it[0] == "lg"
        pg, pc = self.pos.get(sid, (-1, 0))
        start = max(lo, pg if (pc <= c and not (isvm and pc == 0)) else pg + 1)
        assert start <= hi, ("window", sid, it, lo, hi, pg)
        if slack is not None: hi = min(hi, max(start, lo + slack))
        def eff(t):
            if c == 0 and self.nsa[t] == 0 and not self.nvm[t] and not self.resv[t]: return cost - 4
            if isvm and self.nsa[t]: return cost + 4
            return cost
        def full(t):
            if c == 0 and eff(t) == cost and t < hi and not force: return True
            return self.load[t] + eff(t) > self.caps[t] or (isvm and self.nvm[t]) or (islg and self.base[t] == 8 and self.nlg[t] >= self.maxlg)
        t = start
        if not force:
            while t <= hi and full(t): t += 1
            if t > hi:
                t = min(range(start, hi + 1), key=lambda x: (self.load[x] + eff(x) - self.caps[x] + (8 if isvm and self.nvm[x] else 0), x))
        self.slots[t].append((c, self.seq, it)); self.seq += 1
        self.load[t] += eff(t); self.nvm[t] += isvm; self.nlg[t] += islg; self.nsa[t] += (c == 0)
        self.pos[sid] = (t, c)
        return t
    def spread(self, sid, items, lo, hi, asap=False, slack=None):
        m = len(items)
        for k, it in enumerate(items):
            tgt = lo if asap else lo + (k * (hi + 1 - lo)) // m
            self.put(sid, it, min(tgt, hi), hi if slack is None else min(self.n - 1, hi + 4), slack=slack)
    def level(self, sid, items, lo, hi, side=None):
        tot = sum(cls_cost(x)[1] for x in items)
        ex = 0
        while sum(max(0, self.base[i] + ex - self.load[i]) for i in range(lo, hi + 1)) < tot + 4 * (1 + len([x for x in items if cls_cost(x)[1] > 4]) // 2): ex += 4
        save = self.caps[lo:hi + 1]
        for i in range(lo, hi + 1): self.caps[i] = self.base[i] + ex
        for it in items:
            if side and isinstance(it, tuple): self.put(side, it, self.pos[sid][0] + 1, force=True)
            else: self.put(sid, it, lo, hi)
        self.caps[lo:hi + 1] = save
    def pour(self, sid, items, lo, hi, side=None):
        if sid in self.pos: lo = max(lo, self.pos[sid][0] + (1 if self.pos[sid][1] > 2 else 0))
        tot = sum(cls_cost(x)[1] for x in items)
        n = hi + 1 - lo
        free = sum(max(0, self.base[i] - self.load[i]) for i in range(lo, hi + 1))
        extra = max(0.0, (tot - free) / float(n))
        scale = min(1.0, tot / float(free)) if free else 1.0
        g = lo; credit = 0.0
        credit += max(0, self.base[g] - self.load[g]) * scale + extra
        for it in items:
            c = cls_cost(it)[1]
            if side and isinstance(it, tuple):
                self.put(side, it, min(g + 1, self.n - 1), force=True); credit -= c; continue
            while g < hi and (credit < c * 0.5 or (extra == 0 and self.load[g] + c > self.base[g])):
                g += 1; credit += max(0, self.base[g] - self.load[g]) * scale + extra
            t = self.put(sid, it, g, max(hi, g), force=True)
            while g < t:
                g += 1; credit += max(0, self.base[g] - self.load[g] + (c if g == t else 0)) * scale + extra
            credit -= c
    def softmax(self, sid, exps, smalls, nt, lo, hi):
        if sid in self.pos: lo = max(lo, self.pos[sid][0] + (1 if self.pos[sid][1] > 2 else 0))
        def plan(allow):
            ie = 0; js = 0; freed = 0; out = []; credit = 0.0
            done_prev = 0
            for gp in range(lo, hi + 1):
                free = self.base[gp] - self.load[gp]
                credit += allow
                done_prev = ie
                while True:
                    can_e = ie < len(exps) and ie < freed + nt
                    can_s = js < len(smalls) and smalls[js][1] <= done_prev
                    ce = cls_cost(exps[ie])[1] if can_e else 0
                    cs = cls_cost(smalls[js][0])[1] if can_s else 0
                    pick = None
                    if can_e and free >= ce: pick = "e"
                    elif can_s and free >= cs: pick = "s"
                    elif can_e and free > 0 and credit >= ce - free: pick = "e"
                    elif can_s and credit >= 2 * (cs - max(free, 0)): pick = "s"
                    elif can_e and credit >= 2 * (ce - max(free, 0)): pick = "e"
                    if pick is None: break
                    c = ce if pick == "e" else cs
                    if c > free: credit -= c - max(free, 0)
                    free -= c
                    if pick == "e": out.append((gp, exps[ie])); ie += 1
                    else:
                        out.append((gp, smalls[js][0])); freed = max(freed, smalls[js][2]); js += 1
                        if cls_cost(out[-1][1])[0] == 3: break
            return out if (ie == len(exps) and js == len(smalls)) else None
        allow = 0.0
        while True:
            out = plan(allow)
            if out: break
            allow += 0.25
            assert allow < 64
        for gp, it in out:
            if isinstance(it, list) and cls_cost(it)[0] == 3 and not any("cbranch" in x for x in it):
                for x in it: self.put(sid, x, gp, gp, force=True)
            else: self.put(sid, it, gp, gp, force=True)
        return out[-1][0]
    def emit(self, marks=None):
        for i in range(self.n):
            self.g.emit(self.mf[i])
            tags = {x[2][2] for x in self.slots[i] if isinstance(x[2], tuple) and x[2][0] in ("vm", "lg")}
            for c, _, it in self.slots[i]:
                if c == 0 and isinstance(it, tuple):
                    want = set()
                    for t in it[1:]: want |= set(t) if isinstance(t, (list, tuple)) else {t}
                    assert not (want & tags), ("wait before its ops", it, tags)
            for _, _, it in sorted(self.slots[i], key=lambda x: (x[0], x[1])): self.g.emit(it)
            if marks and i in marks: marks[i]()
        return sum(max(0, l - b) for l, b in zip(self.load, self.base))

class G:
    def __init__(self, opts):
        self.L = []; self.o = opts; self.vm = []; self.lg = []
    def e(self, s): self.L.append(s if s.endswith(":") else "    " + s)
    def lab(self, s): self.L.append(s + ":")
    def emit(self, it):
        if isinstance(it, str): self.e(it); return
        if isinstance(it, list):
            for x in it: self.emit(x)
            return
        kind = it[0]
        if kind == "vm": self.e(it[1]); self.vm.append(it[2])
        elif kind == "lg": self.e(it[1]); self.lg.append(it[2])
        elif kind == "wvm": self.e("s_waitcnt vmcnt(%d)" % self.cnt(self.vm, it[1], 63))
        elif kind == "wlg": self.e("s_waitcnt lgkmcnt(%d)" % self.cnt(self.lg, it[1], 15))
        elif kind == "wboth":
            self.e("s_waitcnt vmcnt(%d) lgkmcnt(%d)" % (self.cnt(self.vm, it[1], 63), self.cnt(self.lg, it[2], 15)))
        else: raise ValueError(kind)
    def cnt(self, lst, tags, mx):
        if not isinstance(tags, (list, tuple)): tags = [tags]
        last = -1
        for t in tags:
            idx = [i for i, x in enumerate(lst) if x == t]
            assert idx, "tag %r never issued" % (t,)
            last = max(last, idx[-1])
        return min(len(lst) - 1 - last, mx)

def vr(b, n=4): return "v[%d:%d]" % (b, b + n - 1)
def ar(b, n=4): return "a[%d:%d]" % (b, b + n - 1)
def sr(b, n=4): return "s[%d:%d]" % (b, b + n - 1)
def mfma(d, a, b, c): return "v_mfma_f32_32x32x16_bf16 %s, %s, %s, %s" % (d, a, b, c)
def mfma16(d, a, b, c): return "v_mfma_f32_16x16x32_bf16 %s, %s, %s, %s" % (d, a, b, c)

sW, sR, sG, sREG = 3, 4, 5, 8
sRC, sJ = sR, sG
sJA, sPRE = 6, 7
sA, sB_, sC, sD, sE = 9, 10, 11, 12, 13
sP, sOPF, sOK, sOV, sOM, sOH, sOS = 14, 15, 16, 17, 18, 19, 20
sKD, sKSUM, sVD, sVSUM, sKR, sVR, sK0, sBO, sOH2, sOS2, sXO = 21, 22, 23, 24, 25, 26, 27, 28, 29, 30, 31
sCNT, sBIG, sRET = 32, 33, 34
sT0 = 36
sDBG = 38
sSPIN, sOW2, sPB = 40, 41, 42
SX, SWQ, SW1, SK, SV, SWO, SW2, SWS, SOUT, SB1, SB2 = 44, 48, 52, 56, 60, 64, 68, 72, 76, 80, 84
sIDX, sB2O, sU, sINV, sPOLL, sF = 88, 89, 92, 93, 94, 95
vLANE16 = 192; vL128 = 193; vB = [194, 195]
vWQ = [196, 197, 198, 199]; vW1 = [200, 201, 202, 203]
vWO = [204, 205, 208, 209]; vTW = [206, 207]
vKD = 208; vVD = [209, 210]; vKR = [211, 212]; vVR = [[213, 214], [215, 223]]
vTAG = 216
vRS = [218, 219, 220, 221]
LAC = [184, 188, 196, 218]; ONES = 200; vOR = 230; vDUM = 231; NT = 6
SHIFT = 16.0
vST = 222
vT = 224; AF = 224
GP = 16

def gen(opts):
    g = G(opts); e = g.e
    GG = opts.get("G", 2)
    stamps = opts.get("stamps", False)
    nst = [0]
    def stamp(fine=False):
        if stamps and not opts.get("light") and (not fine or opts.get("fine")):
            i = nst[0]; nst[0] += 1
            e("s_memtime s[90:91]"); e("s_memrealtime s[96:97]"); e("s_waitcnt lgkmcnt(0)")
            e("v_writelane_b32 v%d, s90, %d" % (vST, i)); e("v_writelane_b32 v%d, s96, %d" % (vST, 32 + i))
    hdr = open("recurrent_scan__sliding_block_cached__dense_activation_squared_relu__prompt.s.ref").read().split("\n")
    for ln in hdr:
        if ln.startswith("; @launch"): break
        g.L.append(ln)
    g.L.append("; @launch grid=(256,1,1) block=(256,1,1) lds=163840")
    g.L += ['.amdgcn_target "amdgcn-amd-amdhsa--gfx950"', ".text", ".globl " + KNAME, ".p2align 8", ".type %s,@function" % KNAME]
    g.lab(KNAME)
    e("s_cmp_ge_u32 s2, 256")
    e("s_cbranch_scc1 L_end")
    e("s_getpc_b64 s[%d:%d]" % (sPB, sPB + 1))
    g.lab("L_pc")
    e("s_and_b32 s%d, s2, 8" % sB_)
    e("s_lshl_b32 s%d, s%d, 12" % (sB_, sB_))
    e("v_lshl_add_u32 v66, v0, 7, s%d" % sB_)
    e("v_min_u32 v66, L_codeend-L_pc-4, v66")
    g.emit(("vm", "global_load_dword v66, v66, s[%d:%d]" % (sPB, sPB + 1), "cpf"))
    for d, off in ((SX, 0), (SW1, 48), (SWQ, 24), (SK, 8), (SV, 16), (SWO, 32), (SB1, 56), (SW2, 64), (SB2, 72), (SOUT, 80), (sDBG, 88), (SWS, 96)):
        e("s_load_dwordx2 s[%d:%d], s[0:1], %d" % (d, d + 1, off))
    if stamps:
        e("v_mov_b32 v%d, 0" % vST); e("s_memtime s[90:91]"); e("s_memrealtime s[96:97]")
    L0 = 64
    e("v_lshrrev_b32 v65, 6, v0")
    e("v_and_b32 v%d, 63, v0" % L0)
    e("v_readfirstlane_b32 s%d, v65" % sW)
    e("s_lshr_b32 s%d, s2, 3" % sIDX)
    e("s_and_b32 s%d, s2, 7" % sE)
    lg = {1: 0, 2: 1, 4: 2, 8: 3}[GG]
    e("s_lshr_b32 s%d, s%d, %d" % (sP, sIDX, lg))
    e("s_lshr_b32 s%d, s%d, %d" % (sB_, sE, 3 - lg))
    e("s_lshl_b32 s%d, s%d, %d" % (sB_, sB_, 5 - lg))
    e("s_add_u32 s%d, s%d, s%d" % (sR, sB_, sP))
    vXL, vXW = 67, 68
    e("v_lshrrev_b32 v65, 3, v%d" % L0)
    e("v_and_b32 v69, 7, v%d" % L0)
    e("v_lshlrev_b32 v%d, 10, v65" % vXL)
    e("v_lshl_or_b32 v%d, v69, 4, v%d" % (vXL, vXL))
    e("s_lshl_b32 s%d, s%d, 2" % (sA, sR))
    e("s_add_u32 s%d, s%d, s%d" % (sA, sA, sW))
    e("s_lshl_b32 s%d, s%d, 14" % (sA, sA))
    e("s_add_u32 s%d, s%d, 8192" % (sB_, sA))
    for d, size in ((SX, 2048 * 512 * 2), (SW1, 512 * 1792 * 2), (SWQ, 512 * 4096 * 2), (SK, 0x20000), (SV, 0x20000), (SWO, 0x80000),
                    (SB1, 1792 * 2), (SW2, 1792 * 512 * 2), (SB2, 1024), (SOUT, 2048 * 512 * 2), (SWS, WS_SIZE)):
        e("s_mov_b32 s%d, 0x%x" % (d + 2, size)); e("s_mov_b32 s%d, 0x20000" % (d + 3))
    e("s_waitcnt lgkmcnt(0)")
    if stamps:
        e("v_writelane_b32 v%d, s90, 0" % vST); e("v_writelane_b32 v%d, s96, 62" % vST); e("v_writelane_b32 v%d, s96, 32" % vST); nst[0] = 1
    XR = 0
    for i in range(16):
        rg, cb = i // 8, i % 8
        g.emit(("vm", "buffer_load_dwordx4 %s, v%d, %s, s%d offen offset:%d" % (vr(XR + 4 * i), vXL, sr(SX), sB_ if rg else sA, cb * 128), "x%d" % i))
    stamp(True)
    e("v_lshlrev_b32 v%d, 7, v%d" % (vL128, L0))
    e("s_and_b32 s%d, s%d, %d" % (sB_, sE, 8 // GG - 1))
    e("s_lshl_b32 s%d, s%d, %d" % (sB_, sB_, lg))
    e("s_and_b32 s%d, s%d, %d" % (sC, sIDX, GG - 1))
    e("s_add_u32 s%d, s%d, s%d" % (sG, sB_, sC))
    e("s_mul_i32 s%d, s%d, %d" % (sREG, sW, RS))
    e("v_mul_u32_u24 v70, %d, v65" % XROW)
    e("v_add_u32 v70, s%d, v70" % sREG)
    e("v_lshl_add_u32 v%d, v69, 4, v70" % vXW)
    H, R_, C_, T4, T2 = 71, 72, 73, 74, 75
    e("v_lshrrev_b32 v%d, 5, v%d" % (H, L0))
    e("v_bfe_u32 v%d, v%d, 2, 2" % (R_, L0))
    e("v_and_b32 v%d, 3, v%d" % (C_, L0))
    e("v_lshrrev_b32 v%d, 4, v%d" % (T4, L0))
    e("v_and_b32 v%d, 1, v%d" % (T2, T4))
    e("v_lshlrev_b32 v76, 6, v%d" % T2)
    e("v_lshl_or_b32 v76, v%d, 4, v76" % C_)
    e("v_lshl_add_u32 v77, v%d, 2, v%d" % (H, R_))
    e("s_lshr_b32 s%d, s%d, 1" % (sA, sG))
    e("s_mul_i32 s%d, s%d, 7" % (sU, sA))
    e("s_and_b32 s%d, s%d, 1" % (sA, sG))
    e("s_lshl_b32 s%d, s%d, 2" % (sA, sA))
    e("s_add_u32 s%d, s%d, s%d" % (sA, sA, sW))
    e("s_add_u32 s%d, s%d, s%d" % (sU, sU, sA))
    e("s_cmp_eq_u32 s%d, 7" % sA)
    e("s_cselect_b32 s%d, 0x40000000, 0" % sINV)
    e("v_mul_u32_u24 v78, 3584, v77")
    e("v_add3_u32 v%d, v78, v76, s%d" % (vW1[0], sINV))
    def dmaoffs(vo, stride):
        st = 8 * stride - 1024
        return ["v_xor_b32 v%d, 32, v%d" % (vo[1], vo[0]), "v_add_u32 v%d, %d, v%d" % (vo[1], st, vo[1]),
                "v_add_u32 v%d, %d, v%d" % (vo[2], 2 * st, vo[0]), "v_add_u32 v%d, %d, v%d" % (vo[3], 2 * st, vo[1])]
    g.emit(dmaoffs(vW1, 3584))
    RG = opts.get("rg", 1); lrg = {1: 0, 2: 1, 4: 2}[RG]
    e("s_and_b32 s%d, s%d, %d" % (sK0, sP, 16 // RG - 1))
    e("s_lshl_b32 s%d, s%d, 7" % (sOH, sU))
    e("s_mul_i32 s%d, s%d, %d" % (sOM, sK0, RG * 32 * 3584))
    e("s_add_u32 s%d, s%d, s%d" % (sOM, sOM, sOH))
    e("s_lshl_b32 s%d, s%d, %d" % (sBO, sK0, 6 + lrg))
    W1TOT = 512 * 3584
    def adma(n):
        ps = n // 16
        srdn, vo = (SW1, vW1) if ps == 0 else (SWQ, vWQ)
        pre = ["s_add_u32 m0, s%d, %d" % (sREG, aslot(n))]
        if n == 16: pre += ["s_mov_b32 s%d, s%d" % (sOM, sF)]
        elif n > 16:
            pre += ["s_add_u32 s%d, s%d, %d" % (sOM, sOM, (1 << 18) + (128 if n == 32 else 0))]
            if n % RG == 0: pre += ["s_and_b32 s%d, s%d, 0x3fffff" % (sOM, sOM)]
        elif n > 0:
            pre += ["s_add_u32 s%d, s%d, %d" % (sOM, sOM, 32 * 3584)]
            if n % RG == 0: pre += [["s_cmp_ge_u32 s%d, %d" % (sOM, W1TOT), "s_cselect_b32 s%d, s%d, s%d" % (sOM, sOH, sOM)]]
        else: pre.append("s_nop 0")
        return pre + [("vm", "buffer_load_dwordx4 v%d, %s, s%d offen offset:%d lds" % (vo[b], sr(srdn), sOM, b * 1024), "m%d" % n) for b in range(4)]
    vTA = vVR[0]
    e("v_lshlrev_b32 v78, 3, v%d" % C_)
    e("v_lshl_or_b32 v78, v%d, 6, v78" % R_)
    e("v_lshl_or_b32 v78, v%d, 5, v78" % T2)
    e("v_lshl_add_u32 v79, v%d, 10, v78" % T4)
    e("v_add_u32 v%d, s%d, v79" % (vTA[0], sREG))
    e("v_xor_b32 v%d, 32, v%d" % (vTA[1], vTA[0]))
    e("v_and_b32 v80, 15, v%d" % L0)
    e("v_mul_u32_u24 v81, %d, v80" % XROW)
    e("v_lshl_add_u32 v%d, v%d, 4, v81" % (vB[0], T4))
    e("v_add_u32 v%d, %d, v%d" % (vB[1], 2 * RS, vB[0]))
    vBR = [110, 111]
    for k in range(2): e("v_add_u32 v%d, s%d, v%d" % (vBR[k], sBO, vB[k]))
    e("v_add_u32 v89, %d, v81" % (2 * RS))
    late = []
    a = late.append
    a("v_lshl_add_u32 v%d, v77, 13, v76" % vWQ[0]); late += dmaoffs(vWQ, 8192)
    a("v_lshlrev_b32 v82, 3, v%d" % T4)
    a("v_lshl_add_u32 v%d, v77, 10, v76" % vWO[0])
    a("v_lshlrev_b32 v76, 5, v%d" % H)
    a("v_xor_b32 v%d, v76, v%d" % (vWO[0], vWO[0]))
    a("v_add_u32 v%d, %d, v%d" % (vWO[1], 8192 - 1024, vWO[0]))
    a("v_lshl_add_u32 v76, v%d, 9, v78" % T4)
    a("v_add_u32 v%d, s%d, v76" % (vTW[0], sREG))
    a("v_xor_b32 v%d, 32, v%d" % (vTW[1], vTW[0]))
    a("v_lshlrev_b32 v%d, 4, v%d" % (vLANE16, L0))
    a("v_lshlrev_b32 v76, 6, v%d" % T4)
    a("v_lshl_or_b32 v76, v%d, 4, v76" % C_)
    a("v_lshl_add_u32 v%d, v%d, 8, v76" % (vVD[0], R_))
    a("v_xor_b32 v%d, 32, v%d" % (vVD[1], vVD[0]))
    a("v_add_u32 v%d, %d, v79" % (vVR[1][0], VA + 2 * RS))
    a("v_xor_b32 v%d, 32, v%d" % (vVR[1][1], vVR[1][0]))
    a("v_xor_b32 v77, v80, v%d" % T4)
    a("v_lshlrev_b32 v77, 4, v77")
    a("v_lshl_or_b32 v%d, v%d, 8, v77" % (vKD, T4))
    a("v_lshl_add_u32 v76, v%d, 1, v%d" % (T2, H))
    a("v_xor_b32 v76, v76, v%d" % C_)
    a("v_mul_u32_u24 v77, 1088, v%d" % R_)
    a("v_lshl_add_u32 v77, v%d, 8, v77" % C_)
    a("v_lshl_add_u32 v%d, v76, 4, v77" % vKR[0])
    a("v_add_u32 v%d, %d, v%d" % (vKR[1], 2 * RS, vKR[0]))
    assert (VA & 32) == 0 and (VB & 32) == 0
    lates = []
    a = lates.append
    a("s_lshl_b32 s%d, s%d, 10" % (sF, sG)); a("s_lshl_b32 s%d, s%d, 8" % (sA, sW)); a("s_add_u32 s%d, s%d, s%d" % (sF, sF, sA))
    a("s_lshl_b32 s%d, s%d, %d" % (sA, sK0, 18 + lrg)); a("s_add_u32 s%d, s%d, s%d" % (sF, sF, sA))
    a("s_lshl_b32 s%d, s%d, %d" % (sOV, sP, 14 + (1 if GG == 8 else 0)))
    a("s_lshl_b32 s%d, s%d, 12" % (sA, sW)); a("s_add_u32 s%d, s%d, s%d" % (sOV, sOV, sA))
    a("s_sub_u32 s%d, s%d, %d" % (sOK, sOV, 32 * 256))
    a("s_and_b32 s%d, s%d, 0x1ffff" % (sOV, sOV)); a("s_and_b32 s%d, s%d, 0x1ffff" % (sOK, sOK))
    a("s_mov_b32 s%d, 0x40004000" % sBIG); a("s_mov_b32 s%d, 0" % sSPIN)
    e("s_lshl_b32 s%d, s%d, 19" % (sA, sG))
    e("s_add_u32 s%d, s%d, s%d" % (SWO, SWO, sA)); e("s_addc_u32 s%d, s%d, 0" % (SWO + 1, SWO + 1))
    e("s_add_u32 s%d, s%d, %d" % (sA, sA, 1536 * 256))
    for d in (SK, SV): e("s_add_u32 s%d, s%d, s%d" % (d, d, sA)); e("s_addc_u32 s%d, s%d, 0" % (d + 1, d + 1))
    e("s_lshl_b32 s%d, s%d, 2" % (sE, sP)); e("s_add_u32 s%d, s%d, s%d" % (sE, sE, sW))
    e("s_lshl_b32 s%d, s%d, %d" % (sOPF, sE, 12 + lg))
    e("s_lshl_b32 s%d, s%d, %d" % (sE, sE, 10 + lg))
    e("v_and_b32 v84, 0x%x, v%d" % (1024 * GG - 128, vL128))
    e("s_or_b32 s%d, s2, s%d" % (sA, sW))
    e("s_cmp_lg_u32 s%d, 0" % sA)
    e("s_cbranch_scc0 L_mktag")
    g.lab("L_notag")
    ONE, OLO, OHI = 86, 87, 88
    SUM = [90, 91, 92, 93]; SQ = [94, 95, 96, 97]
    e("v_mov_b32 v%d, 0x3f803f80" % ONE); e("v_mov_b32 v%d, 0x3f80" % OLO); e("v_mov_b32 v%d, 0x3f800000" % OHI)
    for x in SUM + SQ: e("v_mov_b32 v%d, 0" % x)
    e("s_mov_b32 s%d, 0x%x" % (sC, f2u(1.0 / 512)))
    e("s_mov_b32 s%d, 0x%x" % (sD, f2u(1e-5)))
    NEGM = [98, 99]
    dq = []
    for n in range(5):
        a_ = adma(n)
        k = [i for i, x in enumerate(a_) if isinstance(x, tuple)][0]
        dq += [a_[:k + 1]] + [[x] for x in a_[k + 1:]]
    dq += [[("vm", "buffer_load_dword v85, v84, %s, s%d offen" % (sr(srd_), sE), "pf")] for srd_ in (SK, SV)]
    EB = opts.get("eb", 1); BIAS = 112
    if EB:
        dq[-1] += ["v_lshlrev_b32 v82, 3, v%d" % T4, "v_mov_b32 v%d, 0" % vTAG] + \
                  [("vm", "buffer_load_dwordx2 %s, v82, %s, s%d offen offset:%d" % (vr(BIAS + 2 * mt, 2), sr(SB1), sOH, 32 * mt), "b1") for mt in range(4)] + \
                  [("vm", "global_load_dwordx2 %s, v%d, s[%d:%d] sc1" % (vr(vTAG, 2), vTAG, sDBG, sDBG + 1), "tag")]
    for _ in range(opts.get("early", 0)): g.emit(dq.pop(0))
    stamp(True)
    for rg in range(2):
        for i in range(8 * rg, 8 * rg + 8):
            g.emit(("wvm", "x%d" % i))
            for d in range(4):
                x = XR + 4 * i + d
                e("v_dot2c_f32_bf16 v%d, v%d, v%d" % (SUM[2 * rg + d % 2], x, ONE))
                e("v_dot2c_f32_bf16 v%d, v%d, v%d" % (SQ[2 * rg + d % 2], x, x))
            for _ in range(opts.get("dst", 1)):
                if len(dq) > opts.get("keep", 0): g.emit(dq.pop(0))
        stamp(True)
        m, q = SUM[2 * rg], SQ[2 * rg]
        e("s_nop 2")
        e("v_add_f32 v%d, v%d, v%d" % (m, m, m + 1))
        e("v_add_f32 v%d, v%d, v%d" % (q, q, q + 1))
        for pat in ("quad_perm:[1,0,3,2]", "quad_perm:[2,3,0,1]", "row_half_mirror"):
            e("s_nop 0")
            for x in (m, q): e("v_add_f32_dpp v%d, v%d, v%d %s row_mask:0xf bank_mask:0xf" % (x, x, x, pat))
        e("v_mul_f32 v%d, s%d, v%d" % (m, sC, m))
        e("v_cvt_pk_bf16_f32 v100, v%d, v%d" % (m, m))
        e("v_and_b32 v100, 0xffff0000, v100")
        e("v_xor_b32 v%d, 0x80000000, v100" % NEGM[rg])
        for i in range(8 * rg, 8 * rg + 8):
            cb = i % 8
            for d in range(4):
                x = XR + 4 * i + d
                e("v_dot2_f32_bf16 v%d, v%d, v%d, v%d" % (102 + 2 * d, x, OLO, NEGM[rg]))
                e("v_dot2_f32_bf16 v%d, v%d, v%d, v%d" % (103 + 2 * d, x, OHI, NEGM[rg]))
            for d in range(4):
                e("v_cvt_pk_bf16_f32 v%d, v%d, v%d" % (XR + 4 * i + d, 102 + 2 * d, 103 + 2 * d))
            e("ds_write_b128 v%d, %s offset:%d" % (vXW, vr(XR + 4 * i), rg * 8 * XROW + cb * 128))
            if rg and len(dq) > max(2, opts.get("keep", 0)): g.emit(dq.pop(0))
        stamp(True)
    while dq: g.emit(dq.pop(0))
    for rg in range(2):
        m, q = SUM[2 * rg], SQ[2 * rg]
        e("v_mul_f32 v%d, s%d, v%d" % (q, sC, q))
        e("v_fma_f32 v%d, -v%d, v%d, v%d" % (q, m, m, q))
        e("v_max_f32 v%d, 0, v%d" % (q, q))
    e("v_cvt_pk_bf16_f32 v100, v%d, v%d" % (SQ[0], SQ[2]))
    e("v_lshlrev_b32 v101, 16, v100"); e("v_and_b32 v100, 0xffff0000, v100")
    e("v_add_f32 v101, s%d, v101" % sD); e("v_add_f32 v100, s%d, v100" % sD)
    e("v_cvt_pk_bf16_f32 v100, v101, v100")
    e("v_lshlrev_b32 v101, 16, v100"); e("v_and_b32 v100, 0xffff0000, v100")
    e("v_sqrt_f32 v101, v101"); e("v_sqrt_f32 v100, v100"); e("s_nop 0")
    e("v_cvt_pk_bf16_f32 v100, v101, v100")
    e("v_lshlrev_b32 v101, 16, v100"); e("v_and_b32 v100, 0xffff0000, v100")
    e("v_rcp_f32 v101, v101"); e("v_rcp_f32 v100, v100"); e("s_nop 0")
    e("ds_write_b32 v70, v101 offset:1024")
    e("ds_write_b32 v70, v100 offset:%d" % (1024 + 8 * XROW))
    g.emit(("wvm", "m0"))
    def areads(n, slot, tag, regs, astep):
        base = AF + 16 * (n % 2)
        return [("lg", "ds_read_b64_tr_b16 %s, v%d offset:%d" % (vr(base + 4 * mt + 2 * a, 2), regs[mt % 2], slot + a * astep + (mt // 2) * 256), tag)
                for mt in range(4) for a in range(2)]
    def breads(dst, addr, off, tag):
        return [("lg", "ds_read_b128 %s, v%d offset:%d" % (dst(q4), addr[q4 // 2], off + (q4 % 2) * RS), tag) for q4 in range(4)]
    def acc16(accb, mt, q4): return vr(accb + 8 * (4 * (mt // 2) + q4) + 4 * (mt % 2))
    def macro_mf(n, accb, bsrc, first):
        base = AF + 16 * (n % 2)
        return [mfma16(acc16(accb, mt, q4), vr(base + 4 * mt), bsrc(q4), "0" if first else acc16(accb, mt, q4)) for mt in range(4) for q4 in range(4)]
    def kdma(m0, tag):
        it = []
        for b in range(4):
            it += [m0(b), ("vm", "buffer_load_dwordx4 v%d, %s, s%d offen offset:%d lds" % (vKD, sr(SK), sOK, b * 1024), tag)]
        return it + ["s_add_u32 s%d, s%d, 0x4000" % (sOK, sOK), "s_and_b32 s%d, s%d, 0x1ffff" % (sOK, sOK)]
    def vdma(m0, tag):
        return [m0] + [("vm", "buffer_load_dwordx4 v%d, %s, s%d offen offset:%d lds" % (vVD[b % 2], sr(SV), sOV, b * 1024), tag) for b in range(4)] + \
               ["s_add_u32 s%d, s%d, 0x4000" % (sOV, sOV), "s_and_b32 s%d, s%d, 0x1ffff" % (sOV, sOV)]
    def kdma_s(slot, tag): return kdma(lambda b: "s_add_u32 m0, s%d, %d" % (sREG, slot + 64 * b), tag)
    def vdma_s(slot, tag): return vdma("s_add_u32 m0, s%d, %d" % (sREG, slot), tag)
    def bupd(regs, step=256): return ["s_add_u32 s%d, s%d, %d" % (sBO, sBO, step), "s_and_b32 s%d, s%d, 0x3ff" % (sBO, sBO)] + ["v_add_u32 v%d, s%d, v%d" % (regs[k], sBO, vB[k]) for k in range(2)]
    DG = [3, 7, 11, 14]
    def res_dma(sc, g0, sign):
        for k in DG: sc.reserve(g0 + k, 8 * sign)
    def place_dma(sc, dm, g0):
        res_dma(sc, g0, -1)
        k = 0
        for it in dm:
            if isinstance(it, tuple): sc.put("dma", it, g0 + DG[k], g0 + DG[k], force=True); k += 1
            elif k < 4:
                sc.reserve(g0 + DG[k], 8); sc.put("dma", it, max(g0 - 1, 0), g0 + DG[k] - 1); sc.reserve(g0 + DG[k], -8)
            else: sc.put("dma", it, g0, min(g0 + GP + 1, sc.n - 1))
    def place_reads(sc, rd, b, g0):
        if b:
            sc.maxlg = 2
            sc.spread("rd", rd[:2] + b[:2] + rd[2:4] + b[2:], g0, g0 + 11, asap=True)
            sc.maxlg = 1
            sc.spread("rd", rd[4:], g0, g0 + 11, asap=True)
        else: sc.spread("rd", rd, g0, g0 + 11, asap=True)
    def swaps(b): return ["v_permlane16_swap_b32 v%d, v%d" % (b + k, b + 2 + k) for k in range(2)]
    ardA = lambda n: areads(n, aslot(n), "r%d" % n, vTA, 512)

    g.emit(ardA(0))
    e("s_waitcnt lgkmcnt(8)")
    stamp(True)
    e("s_barrier")
    stamp()
    aB = lambda n: (lambda q4: ar(16 * (n % 16) + 4 * q4))
    g.emit(breads(aB(0), vBR, 0, "r0"))
    for q4 in range(4): g.emit(("lg", "ds_read_b32 v%d, v%d offset:%d" % (vRS[q4], 81 if q4 < 2 else 89, 1024 + (q4 % 2) * RS), "rs"))
    if RG == 1: g.emit(bupd(vBR, 64))
    B2 = opts.get("b2", 1)
    if B2: g.emit(breads(aB(1), vBR, 64 * (1 % RG), "r1"))
    g.emit(("wboth", "m1", "r0"))
    mf = []
    for n in range(48): mf += macro_mf(n, [128, 0, 64][n // 16], aB(n), n % 16 == 0)
    sc = Sched(g, mf)
    for n in range(47): res_dma(sc, GP * n, 1)
    for n in range(47):
        g0 = GP * n
        wv = ["m%d" % (n + 2)] if n + 2 < 48 else None
        sc.put("w", ("wboth", wv, "r%d" % (n + 1)) if wv else ("wlg", "r%d" % (n + 1)), g0 + GP - 1, g0 + GP - 1, force=True)
        if B2:
            place_reads(sc, ardA(n + 1), None, g0)
            if n + 2 < 16:
                if (n + 2) % RG == 0: sc.spread("rb", bupd(vBR, 64 * RG), g0 + 4, g0 + 8, asap=True)
                sc.spread("rb", breads(aB(n + 2), vBR, 64 * ((n + 2) % RG), "r%d" % (n + 2)), g0 + 9, g0 + GP - 1, asap=True)
            continue
        b = breads(aB(n + 1), vBR, 64 * ((n + 1) % RG), "r%d" % (n + 1)) if n + 1 < 16 else None
        place_reads(sc, ardA(n + 1), b, g0)
        if (n + 2) % RG == 0 and n + 2 < 16: sc.spread("rd", bupd(vBR, 64 * RG), g0 + 6, g0 + GP - 1, asap=True)
    for n in range(47):
        place_dma(sc, adma(n + 5) if n + 5 < 48 else [kdma_s(K0S, "k0"), kdma_s(KA, "k1"), vdma_s(VA, "v0"), kdma_s(KB, "k2")][n - 43], GP * n)
    XC = opts.get("xcap", 0)
    if XC:
        for i in range(GP * 16, GP * 48, XC): sc.caps[i] += 4
    if opts.get("lcap", 0):
        for i in range(0, GP * 16, 2): sc.caps[i] += 4
    sc.spread("l", late[:5], 0, GP * 10, asap=True)
    sc.spread("l", late[5:], 0, GP * 15, asap=True)
    sc.spread("ls", lates, 0, GP * 10, asap=True)
    BIAS, BU = 112, 90
    if not EB: sc.spread("x", [("vm", "buffer_load_dwordx2 %s, v82, %s, s%d offen offset:%d" % (vr(BIAS + 2 * mt, 2), sr(SB1), sOH, 32 * mt), "b1") for mt in range(4)], GP * 11, GP * 13, slack=3)
    hep = [("wvm", "b1")]
    for k in range(8):
        hep += ["v_lshlrev_b32 v%d, 16, v%d" % (BU + 2 * k, BIAS + k), "v_and_b32 v%d, 0xffff0000, v%d" % (BU + 2 * k + 1, BIAS + k)]
    sc.spread("x", hep, GP * 15 + 8, GP * 17, asap=True)
    def hdst(t, q4): return 160 + 8 * q4 + (4 if t == 0 else 0)
    hep = []
    for t in (1, 0):
        for q4 in range(4):
            b = 128 + 8 * (4 * t + q4)
            hep += ["v_fma_f32 v%d, v%d, v%d, v%d" % (b + k, b + k, vRS[q4], BU + 8 * t + k) for k in range(8)]
    sc.spread("x", hep, GP * 16 + 8, GP * 32 - 4, asap=True)
    hep = ["s_mov_b32 s%d, 0x%x" % (sD, f2u(math.log2(math.e) / math.sqrt(128.0)))] + ["v_mul_f32 v%d, s%d, v%d" % (vRS[k], sD, vRS[k]) for k in range(4)]
    for t in (1, 0):
        for q4 in range(4):
            b = 128 + 8 * (4 * t + q4)
            hep += ["v_max_f32 v%d, 0, v%d" % (b + k, b + k) for k in range(8)]
            hep += ["v_mul_f32 v%d, v%d, v%d" % (b + k, b + k, b + k) for k in range(8)]
            hep += ["v_cvt_pk_bf16_f32 v%d, v%d, v%d" % (hdst(t, q4) + k, b + 2 * k, b + 2 * k + 1) for k in range(4)]
    sc.spread("x", hep, GP * 16, GP * 48 - 1, asap=True)
    def qpack(half):
        it = []; pend = []
        for gi in range(8 * half, 8 * half + 8):
            b = 8 * gi; d = 4 * gi
            it += ["v_mul_f32 v%d, v%d, v%d" % (b + k, b + k, vRS[gi % 4]) for k in range(8)] + pend
            it += ["v_cvt_pk_bf16_f32 v%d, v%d, v%d" % (d + k, b + 2 * k, b + 2 * k + 1) for k in range(4)]
            pend = swaps(d)
        return it + ["s_nop 1"] + pend
    vZ = 240; vFO = 241; vFL = 242; vP16 = 244
    if not EB: sc.spread("y", ["v_mov_b32 v%d, 0" % vTAG, ("vm", "global_load_dwordx2 %s, v%d, s[%d:%d] sc1" % (vr(vTAG, 2), vTAG, sDBG, sDBG + 1), "tag")], GP * 12, GP * 13, slack=3)
    su = ["s_mul_i32 s%d, s%d, %d" % (sOH, sR, 224 * 1024),
          "s_lshl_b32 s%d, s%d, 13" % (sA, sU), "s_add_u32 s%d, s%d, s%d" % (sOH, sOH, sA), "s_add_u32 s%d, s%d, s%d" % (sOH, sOH, sINV),
          "s_add_u32 s%d, s%d, 4096" % (sOH2, sOH),
          "s_add_u32 s%d, s%d, %d" % (sKD, sREG, KA), "s_add_u32 s%d, s%d, %d" % (sVD, sREG, VB),
          "s_lshl_b32 s%d, s%d, 1" % (sA, sREG), "s_add_u32 s%d, s%d, %d" % (sKSUM, sA, KA + KB), "s_add_u32 s%d, s%d, %d" % (sVSUM, sA, VA + VB),
          "s_mov_b32 s%d, 0x%x" % (sKR, (KA - KB) & 0xffffffff), "s_mov_b32 s%d, 0x%x" % (sVR, (VB - VA) & 0xffffffff),
          "s_mov_b32 s%d, 0" % sCNT,
          "s_mul_i32 s%d, s%d, %d" % (sOW2, sW, 448 * 1024), "s_lshl_b32 s%d, s%d, 7" % (sA, sJ), "s_add_u32 s%d, s%d, s%d" % (sOW2, sOW2, sA),
          "s_lshl_b32 s%d, s%d, 8" % (sOS, sR), "s_lshl_b32 s%d, s%d, 5" % (sA, sG), "s_add_u32 s%d, s%d, s%d" % (sOS, sOS, sA),
          "s_lshl_b32 s%d, s%d, 3" % (sA, sW), "s_add_u32 s%d, s%d, s%d" % (sOS, sOS, sA), "s_add_u32 s%d, s%d, 0x%x" % (sOS, sOS, HF_OFF),
          "s_lshl_b32 s%d, s%d, 8" % (sPOLL, sRC), "s_lshl_b32 s%d, s%d, 6" % (sA, sW), "s_add_u32 s%d, s%d, s%d" % (sPOLL, sPOLL, sA),
          "s_add_u32 s%d, s%d, 0x%x" % (sPOLL, sPOLL, HF_OFF),
          "s_lshl_b32 s%d, s2, 2" % sC, "s_add_u32 s%d, s%d, s%d" % (sC, sC, sW), "s_lshl_b32 s%d, s%d, 11" % (sC, sC),
          "s_mul_i32 s%d, s%d, %d" % (sF, sRC, 224 * 1024), "s_mul_i32 s%d, s%d, %d" % (sA, sW, 56 * 1024), "s_add_u32 s%d, s%d, s%d" % (sF, sF, sA),
          ] + ["v_mov_b32 v%d, 0x3f803f80" % (ONES + k) for k in range(3)]
    vB2 = ONES + 3
    sc.spread("y", ["s_lshl_b32 s%d, s%d, 7" % (sB2O, sJ), "s_lshl_b32 s%d, s%d, 20" % (sA, sW), "s_add_u32 s%d, s%d, s%d" % (sA, sA, sB2O), "v_lshrrev_b32 v%d, 3, v%d" % (vB2, vLANE16),
                    ("vm", "buffer_load_ushort v%d, v%d, %s, s%d offen" % (vB2, vB2, sr(SB2), sA), "b2")], GP * 11, GP * 12, slack=4)
    sHL = sF
    sc.spread("x", qpack(0), GP * 32 + 8, GP * 48 - 1, asap=True)
    sc.spread("y", su, GP * 24, GP * 48 - 1, asap=True)
    sc.spread("rd", ["v_add_u32 v%d, %d, v%d" % (vVR[0][k], (-2 * RS) & 0xffffffff, vVR[1][k]) for k in range(2)], GP * 47, GP * 48 - 1, asap=True)
    ov = sc.emit({GP * 16 - 1: stamp, GP * 32 - 1: stamp})
    if opts.get("v"): print("stream A overflow", ov, "x end", sc.pos["x"][0] / GP, "y end", sc.pos["y"][0] / GP, "l end", sc.pos["l"][0] / GP, sc.load[GP * 2:GP * 5], "ovf per pass", [sum(max(0, x - 8) for x in sc.load[GP * 16 * k:GP * 16 * (k + 1)]) for k in range(3)])
    stamp()
    KF, VF = 128, 160
    FA, FB = 232, [248, 252, 176, 180]
    def kreads(u, slot, dst, tag):
        return [("lg", "ds_read_b128 %s, v%d offset:%d" % (ar(dst + 4 * s), vKR[u], slot + (s % 2) * RS + (s // 2) * 64), tag) for s in range(8)]
    def vreads(u, dst, tag):
        return [("lg", "ds_read_b64_tr_b16 %s, v%d offset:%d" % (ar(dst + 4 * f + 2 * a, 2), vVR[u][f % 2], a * RS + (f // 2) * 256), tag) for f in range(8) for a in range(2)]
    def S(p): return 64 if p else 128
    def P(p, q4): return 96 + 16 * p + 4 * q4
    def NM(q4): return 160 + 4 * q4
    def OA(f, q4): return 8 * (4 * (f // 2) + q4) + 4 * (f % 2)
    def qk(p, kf, first_c):
        mf = []
        for s in range(8):
            for q4 in range(4):
                d = vr(S(p) + 8 * q4 + 4 * (s % 2))
                mf.append(mfma16(d, ar(kf + 4 * s), vr(4 * (4 * (s // 2) + q4)), d if s >= 2 else first_c(q4)))
        return mf
    def pv(p, vf, zero=False):
        return [mfma16(vr(LAC[q4]), vr(ONES), vr(P(p, q4)), "0" if zero else vr(LAC[q4])) for q4 in range(4)] + \
               [mfma16(ar(OA(f, q4)), ar(vf + 4 * f), vr(P(p, q4)), "0" if zero else ar(OA(f, q4))) for f in range(8) for q4 in range(4)]
    def fmac(fa, fb):
        return [mfma16(ar(192 + 16 * q4 + 4 * mt), vr(fa + 4 * mt), vr(fb[q4]), ar(192 + 16 * q4 + 4 * mt)) for mt in range(4) for q4 in range(4)]
    def freads(m, fa, tag):
        return [("lg", "ds_read_b64_tr_b16 %s, v%d offset:%d" % (vr(fa + 4 * mt + 2 * a, 2), vTW[mt % 2], 4096 * m + a * 2048 + (mt // 2) * 256), tag) for mt in range(4) for a in range(2)]
    def w2dma(m, tag):
        it = []
        for hh in range(2):
            it += ["s_add_u32 m0, s%d, %d" % (sREG, 4096 * m + 2048 * hh)]
            it += [("vm", "buffer_load_dwordx4 v%d, %s, s%d offen offset:%d lds" % (vWO[b], sr(SW2), sOW2, b * 1024), tag) for b in range(2)]
            it += ["s_add_u32 s%d, s%d, 0x4000" % (sOW2, sOW2)]
        return it
    def hload(fb, tag):
        return [("vm", "buffer_load_dwordx4 %s, v%d, %s, s%d offen offset:%d sc1" % (vr(fb[q4]), vLANE16, sr(SWS), sHL, 1024 * q4), tag) for q4 in range(4)] + \
               ["s_add_u32 s%d, s%d, 4096" % (sHL, sHL)]
    rare_sites = {}
    def smx(p, name=None, subs=None):
        T = lambda i: vT + (i % NT)
        exps = [([subs[i]] if subs else []) + ["v_exp_f32 v%d, v%d" % (T(i), S(p) + i)] for i in range(32)]
        exps = [x if len(x) > 1 else x[0] for x in exps]
        sm_ = []
        for j in range(16):
            sm_.append(("v_cvt_pk_bf16_f32 v%d, v%d, v%d" % (P(p, 0) + j, T(2 * j), T(2 * j + 1)), 2 * j + 2, 2 * j + 2))
            if name:
                if j == 2: sm_.append(("v_or3_b32 v%d, v%d, v%d, v%d" % (vOR, P(p, 0), P(p, 0) + 1, P(p, 0) + 2), 0, 0))
                elif j > 2 and j % 2 == 0: sm_.append(("v_or3_b32 v%d, v%d, v%d, v%d" % (vOR, vOR, P(p, 0) + j - 1, P(p, 0) + j), 0, 0))
        if name:
            rare_sites[name] = p
            sm_.append(("v_or_b32 v%d, v%d, v%d" % (vOR, vOR, P(p, 0) + 15), 0, 0))
            sm_.append(("v_and_b32 v%d, s%d, v%d" % (vOR, sBIG, vOR), 0, 0))
            sm_.append(("v_cmp_ne_u32 vcc, 0, v%d" % vOR, 0, 0))
            sm_.append((["s_cbranch_vccnz L_rare%s" % name, "L_back%s:" % name], 0, 0))
        return exps, sm_
    def sm_flat(p):
        ex, sm_ = smx(p)
        x = ex[:2]
        for j in range(16): x += ex[2 * j + 2:2 * j + 4] + (["s_nop 0"] if j == 15 else []) + [sm_[j][0]]
        return x
    def allreduce(op, regs, tmps, fill):
        it = []
        for sw in ("v_permlane16_swap_b32", "v_permlane32_swap_b32"):
            it += ["v_mov_b32 v%d, v%d" % (t, r) for r, t in zip(regs, tmps)] + fill()
            it += ["%s v%d, v%d" % (sw, t, r) for r, t in zip(regs, tmps)]
            it += ["%s v%d, v%d, v%d" % (op, r, r, t) for r, t in zip(regs, tmps)]
        return it
    def rowmax(p, regs):
        it = []
        for q4 in range(4):
            s0 = S(p) + 8 * q4; t = regs[q4]
            it += ["v_max3_f32 v%d, v%d, v%d, v%d" % (t, s0, s0 + 1, s0 + 2), "v_max3_f32 v%d, v%d, v%d, v%d" % (t, t, s0 + 3, s0 + 4),
                   "v_max3_f32 v%d, v%d, v%d, v%d" % (t, t, s0 + 5, s0 + 6),
                   "v_max_f32 v%d, v%d, v%d" % (t, t, s0 + 7)]
        return it
    poll = "buffer_load_dwordx2 %s, v%d, %s, s%d offen sc1" % (vr(vFL, 2), vFO, sr(SWS), sPOLL)
    cmpf = "v_cmp_ne_u64 vcc, %s, %s" % (vr(vFL, 2), vr(vTAG, 2))
    g.emit(("wvm", ["k0", "k1"]))
    e("s_barrier")
    stamp(True)
    g.emit(kreads(1, K0S, KF, "kf0"))
    g.emit(kreads(0, KA, VF, "kf1"))
    qp = qpack(1)
    g.emit(qp[:30])
    g.emit(("wlg", "kf0"))
    sc = Sched(g, qk(0, KF, lambda q4: "0"))
    hst = [("vm", "buffer_store_dwordx4 %s, v%d, %s, s%d offen offset:%d sc1" % (vr(hdst(t, q4)), vLANE16, sr(SWS), [sOH, sOH2][t], q4 * 1024), "hst")
           for q4 in range(4) for t in range(2)]
    sc.spread("h", hst, 0, 25)
    h1 = len(qp) // 2 + 9
    sc.pour("q", qp[30:h1] + ["s_nop 0"], 0, 15)
    sc.pour("q", qp[h1:] + ["s_nop 1"], 8, 23)
    sc.spread("h", ["v_and_b32 v%d, 0x780, v%d" % (vP16, vL128), ("vm", "buffer_load_dword v%d, v%d, %s, s%d offen" % (vP16, vP16, sr(SW2), sC), "pf")], 26, 29)
    ZOFF = 40704; vZA = 245; vZB = 246; XL = 37888
    sc.spread("z", ["v_mov_b32 v%d, 0" % vZ, "v_lshrrev_b32 v%d, 2, v%d" % (vZA, vLANE16), "v_add_u32 v%d, s%d, v%d" % (vZA, sREG, vZA),
                    "v_lshrrev_b32 v%d, 4, v%d" % (vZB, vLANE16), "v_and_b32 v%d, 0x30, v%d" % (vZB, vZB), "v_add_u32 v%d, s%d, v%d" % (vZB, sREG, vZB),
                    "v_lshlrev_b32 v%d, 16, v%d" % (vB2, vB2),
                    ("lg", "ds_write_b32 v%d, v%d offset:%d" % (vZA, vB2, ZOFF), "zw"),
                    "v_and_b32 v%d, 0x70, v%d" % (vFO, vLANE16), "v_lshrrev_b32 v%d, 1, v%d" % (vFO, vFO), "s_mov_b32 s%d, 0x%x" % (sD, f2u(SHIFT))], 22, 31, asap=True)
    sc.emit()
    stamp(True)
    MX = [232, 233, 234, 235]; MT = [236, 237, 238, 239]
    zr = [("lg", "ds_read_b128 %s, v%d offset:%d" % (ar(192 + 4 * i), vZB, ZOFF + 64 * (i % 4)), "zr") for i in range(16)]
    g.emit(zr[:6] + ["v_mov_b32 v%d, 0x3f803f80" % vB2, "v_and_b32 v%d, 0x%x, v%d" % (vL128, 1024 * GG - 128, vL128)])
    g.emit(rowmax(0, MX))
    g.emit(allreduce("v_max_f32", MX, MT, lambda: []))
    for q4 in range(4): e("v_add_f32 v%d, s%d, v%d" % (MX[q4], sD, MX[q4]))
    for q4 in range(4):
        for k in range(4): e("v_sub_f32 v%d, 0, v%d" % (NM(q4) + k, MX[q4]))
    nmc = lambda q4: vr(NM(q4))
    subs = ["v_sub_f32 v%d, v%d, v%d" % (S(0) + k, S(0) + k, MX[k // 8]) for k in range(32)]
    g.emit(("wlg", "kf1"))
    stamp(True)
    sc = Sched(g, qk(1, VF, nmc))
    sc.spread("k", kreads(1, KA, KF, "kf"), 0, 15)
    sc.spread("k", ["v_add_u32 v%d, %d, v%d" % (vKR[u], KB, vKR[u]) for u in range(2)], 16, 20)
    sc.put("b", [("wboth", ["k2", "v0"], "kf"), "s_barrier"], 27, 27, force=True)
    ex, sm_ = smx(0, None, subs)
    sc.softmax("s", ex, sm_, NT, 0, 31)
    sc.emit()
    stamp()
    fl = ["v_cmp_eq_u32 vcc, 0, v%d" % vTAG, "s_cbranch_vccnz L_tagwait", "L_tagok:", ("wvm", "hst"), "s_mov_b64 exec, 1",
          ("vm", "buffer_store_dwordx2 %s, v%d, %s, s%d offen sc1" % (vr(vTAG, 2), vZ, sr(SWS), sOS), "hflag"), "s_mov_b64 exec, -1"]

    NP = opts.get("np", 1); NL = 7 - NP; NE = 2 * (NP - 1)
    def attn_iter(withF, name, first=False, last=False):
        f = 16 if withF else 0
        F = [0, 68 + f]; QK = [f, 68 + 2 * f]; PVs = [32 + f, 100 + 2 * f]
        n = 136 + 2 * f
        fs = fmac(FA, FB) if withF else []
        sc = Sched(g, fs + qk(0, KF, nmc) + pv(0, VF, zero=first) + fs + qk(1, KF, nmc) + pv(1, VF))
        sc.maxlg = opts.get("mlg", 2)
        BG = n - 9
        v0 = vreads(0, VF, "vf0")
        kd = kdma(lambda b: "s_add_u32 m0, s%d, %d" % (sKD, 64 * b), "kl") + ["s_sub_u32 s%d, s%d, s%d" % (sKD, sKSUM, sKD)]
        vd = vdma("s_mov_b32 m0, s%d" % sVD, "vl") + ["s_sub_u32 s%d, s%d, s%d" % (sVD, sVSUM, sVD)]
        def pairs(sid, items, lo, hi):
            m = len(items) // 2
            for k in range(m):
                t = lo + (k * (hi + 1 - lo)) // m
                while sc.load[t] > 0 and t < hi: t += 1
                t = sc.put(sid, items[2 * k], t, hi + 2); sc.put(sid, items[2 * k + 1], t, hi + 2)
        sc.put("b", ("wboth", ["kl", "vl"], "kf1"), BG, BG, force=True); sc.put("b", "s_barrier", BG, BG, force=True); sc.reserve(BG, 4)
        sc.put("w", ("wboth", "p_w1", "vf0") if withF else ("wlg", "vf0"), PVs[0] + 3, PVs[0] + 3, force=True)
        sc.put("w", ("wboth", "h1", ["fa1", "kf0"]) if withF else ("wlg", "kf0"), F[1] - 1, F[1] - 1, force=True)
        sc.put("w", ("wboth", "w0", "vf1") if (withF or last) else ("wlg", "vf1"), PVs[1] + 3, PVs[1] + 3, force=True)
        if withF:
            sc.put("w", ("wboth", ["h0"], "fa0"), n - 2, n - 2, force=True)
            sc.put("w", "s_cmp_lt_u32 s%d, %d" % (sCNT, NL), n - 1, n - 1, force=True)
            sc.put("w", "s_cbranch_scc1 L_attn", n - 1, n - 1, force=True)
            sc.reserve(n - 1, 4)
            sc.spread("h", hload(FB, "h1"), 16, 23)
            sc.spread("d", w2dma(0, "w0") + kd + vd, 24, F[1] - 4)
            sc.spread("h", hload(FB, "h0"), F[1] + 16, F[1] + 23)
            sc.spread("d", w2dma(1, "w1") + [("vm", "buffer_load_dword v%d, v%d, %s, s%d offen" % (vDUM, vL128, sr(SWO), sOPF), "pf2"), "s_add_u32 s%d, s%d, %d" % (sOPF, sOPF, 1024 * GG),
                            "s_add_u32 s%d, s%d, 1" % (sCNT, sCNT), ["s_cmp_eq_u32 s%d, %d" % (sCNT, NL - 1), "s_cselect_b32 s%d, 0, s%d" % (SK + 2, SK + 2)]], F[1] + 24, F[1] + 54)
            sc.maxlg = 1
            sc.spread("fa", freads(1, FA, "fa1"), PVs[0] + 4, F[1] - 10)
        else:
            if first: sc.put("h", fl, 0, 0, force=True)
            pf = [] if first else [("vm", "buffer_load_dword v%d, v%d, %s, s%d offen" % (vDUM, vL128, sr(SWO), sOPF), "pf2"), "s_add_u32 s%d, s%d, %d" % (sOPF, sOPF, 1024 * GG)]
            if last:
                sc.put("w", ("wboth", ["h0"], "fa0"), n - 1, n - 1, force=True)
                HPG = opts.get("hpg", 70 if first else 2)
                HPD = 30 if first else 60
                sc.put("h", ("vm", poll, "hpoll"), HPG, HPG + 4)
                xd = ["v_bfe_u32 v%d, v%d, 8, 1" % (vZA, vLANE16), "v_lshrrev_b32 v247, 9, v%d" % vLANE16, "v_lshl_add_u32 v%d, v%d, 1, v247" % (vZA, vZA),
                      "v_lshlrev_b32 v%d, 4, v%d" % (vZA, vZA), "v_and_b32 v247, 0xf0, v%d" % vLANE16, "v_lshl_add_u32 v247, v247, 6, v%d" % vZA,
                      "s_lshl_b32 s%d, s%d, 14" % (sA, sW), "s_lshl_b32 s%d, s%d, 16" % (sXO, sRC), "s_add_u32 s%d, s%d, s%d" % (sXO, sXO, sA), "s_add_u32 s%d, s%d, s%d" % (sXO, sXO, sB2O)]
                sc.spread("xd", xd, 1, 16)
                xd = []
                for t in range(2): xd += ["s_add_u32 m0, s%d, %d" % (sREG, XL + 1024 * t - 64 * t), ("vm", "buffer_load_dwordx4 v247, %s, s%d offen offset:%d lds" % (sr(SX), sXO, 64 * t), "xf")]
                sc.spread("d", kd + xd + w2dma(0, "w0") + vd, 4, 60)
                sc.put("h", [("wvm", "hpoll"), cmpf, "s_cbranch_vccnz L_hwait", "L_hok:"], HPG + HPD, HPG + HPD, force=True)
                sc.spread("h", hload(FB, "h0"), max(HPG + HPD + 1, 66), n - 1, asap=True)
                sc.spread("d", w2dma(1, "w1") + pf, sc.pos["h"][0], n - 1, asap=True)
                assert HPG + HPD < PVs[1] + 4
            else: sc.spread("d", kd + vd + pf, 4, 64)
        sc.maxlg = 2
        pairs("v", v0 if first else v0[8:], 0, PVs[0] - 6)
        pairs("v", vreads(1, VF, "vf1"), PVs[0] + 36, PVs[1] - 6)
        sc.maxlg = 1
        sc.spread("k", kreads(0, 0, KF, "kf0"), QK[0] + 32, F[1] - 10)
        sc.spread("k", kreads(1, 0, KF, "kf1"), QK[1] + 32, BG - 9)
        if withF or last: sc.spread("fa", freads(0, FA, "fa0"), PVs[1] + 4, n - 11)
        sc.spread("v", ["v_add_u32 v%d, s%d, v%d" % (vVR[u][k], sVR, vVR[u][k]) for u in range(2) for k in range(2)] + ["s_sub_u32 s%d, 0, s%d" % (sVR, sVR)], PVs[1], BG - 1)
        sc.spread("k", ["v_add_u32 v%d, s%d, v%d" % (vKR[u], sKR, vKR[u]) for u in range(2)] + ["s_sub_u32 s%d, 0, s%d" % (sKR, sKR)], BG - 8, n - 3)
        sc.maxlg = 2
        sc.spread("v", v0[:8], BG + 1, n - 2)
        if first: pairs("z", zr[6:], 30, 60)
        for half in range(2):
            p = (1 + half) % 2
            ex, sm_ = smx(p, "%s%d" % (name, half))
            lo, hi = (0, QK[1] - 1 - opts.get("smb", 8 if withF else 0)) if half == 0 else (F[1], n - 2)
            gb = sc.softmax("s", ex, sm_, NT, lo, hi)
            assert QK[half] + 31 <= gb < (QK[1] if half == 0 else n), (gb, QK)
        return sc
    g.lg = []
    for i in range(NP):
        sc = attn_iter(False, "p%d" % i, first=(i == 0), last=(i == NP - 1))
        ov = sc.emit()
        if opts.get("v"): print("attn0 over", ov)
    stamp()
    e(".p2align 3")
    g.lab("L_attn")
    def prev(l): return ["p_" + x for x in l]
    save = g.L
    outs = []
    seed_vm, seed_lg = prev(g.vm), list(g.lg)
    for it in range(3):
        g.L = []; g.vm = list(seed_vm); g.lg = list(seed_lg)
        n0, l0 = len(g.vm), len(g.lg)
        sc = attn_iter(True, "l")
        ov = sc.emit()
        outs.append(g.L)
        seed_vm, seed_lg = prev(g.vm[n0:]), list(g.lg[l0:])
    if opts.get("v"): print("attn loads", sc.load, "over", ov, "sum", sum(sc.load))
    merged = []
    for lines in zip(*outs):
        if len(set(lines)) == 1: merged.append(lines[0]); continue
        assert all("s_waitcnt" in x for x in lines), lines
        parts = []
        for c in ("vmcnt", "lgkmcnt"):
            v = [re.search(c + r"\((\d+)\)", x) for x in lines]
            if v[0]: parts.append("%s(%d)" % (c, min(int(m.group(1)) for m in v)))
        if opts.get("v"): print("merge", lines)
        merged.append("    s_waitcnt " + " ".join(parts))
    g.L = save + merged
    g.vm = seed_vm; g.lg = seed_lg
    stamp()
    vRL = [48, 50, 52, 54]; vOW = [211, 212]; vBR2 = [200, 201]
    ACCA, ACCB, OP = 128, 64, 64
    FB2 = [16, 20, 24, 28]
    mf = fmac(FA, FB) + pv(0, VF) + fmac(0, FB2) + pv(1, KF)
    M0 = len(mf); P15 = M0 - 36
    def bB(n):
        s = n % 16
        return (lambda q4: vr(16 * (s - 12) + 4 * q4)) if s >= 12 else (lambda q4: ar(16 * s + 4 * q4))
    for n in range(32):
        mf += macro_mf(n, ACCA if n < 16 else ACCB, (lambda q4, n=n: vr(OP + 16 * n + 4 * q4)) if n < 4 else bB(n), n % 16 == 0)
    sc = Sched(g, mf)
    MG = lambda n: M0 + GP * n
    ardB = lambda n: areads(n, BSLOT[n % 5], "r%d" % n, vTW, 2048)
    v0 = vreads(0, VF, "v14b")
    sc.spread("h", hload(FB2, "h27"), 0, 9)
    sc.maxlg = 2
    sc.spread("v", v0[8:], 0, 11)
    sc.put("w", ("wboth", "p_w1", "v14b"), 19, 19, force=True)
    sc.spread("fr", freads(1, 0, "fa"), 20, 34)
    sc.put("w", ("wboth", "h27", "fa"), 51, 51, force=True)
    sc.spread("v", vreads(1, KF, "v15"), 30, 60)
    sc.maxlg = 1
    sc.put("w", [("wlg", "v15"), "s_barrier"], P15 + 3, P15 + 3, force=True)
    def bdma(n):
        pre = ["s_add_u32 m0, s%d, %d" % (sREG, BSLOT[n % 5])]
        if n == 0: pre += ["s_lshl_b32 s%d, s%d, 1" % (sJA, sW), "s_xor_b32 s%d, s%d, s%d" % (sJA, sJA, sG), "s_xor_b32 s%d, s%d, 1" % (sJA, sJA),
                           "s_lshl_b32 s%d, s%d, 10" % (sOM, sW), "s_add_u32 s%d, s%d, s%d" % (sOM, sOM, sJA), "s_lshl_b32 s%d, s%d, 7" % (sOM, sOM)]
        else:
            pre += ["s_add_u32 s%d, s%d, %d" % (sOM, sOM, 32 * 1024)]
            if n == 16: pre += ["s_xor_b32 s%d, s%d, 128" % (sOM, sOM)]
            if n % 4 == 0: pre += ["s_and_b32 s%d, s%d, 0x7ffff" % (sOM, sOM)]
        return pre + [("vm", "buffer_load_dwordx4 v%d, %s, s%d offen offset:%d lds" % (vWO[b], sr(SWO), sOM, b * 1024), "m%d" % n) for b in range(4)]
    sc.spread("dma", ["v_add_u32 v%d, %d, v%d" % (vWO[2 + k], 2 * (8192 - 1024), vWO[k]) for k in range(2)] + bdma(0) + bdma(1) + bdma(2) + bdma(3), opts.get("bd0", 24), P15 + 14, slack=3)
    sc.spread("dma", bdma(4), P15 + 17, M0 - 4, slack=2)
    sc.put("rd", ("wvm", "m0"), M0 - 16, M0 - 16, force=True)
    sc.spread("rd", ardB(0), M0 - 15, M0 - 6)
    sc.put("w", ("wboth", "m1", "r0"), M0 - 1, M0 - 1, force=True)
    ex, sm_ = smx(1, "t")
    sc.softmax("s", ex, sm_, NT, 0, P15 - 2)
    lt = ["s_lshl_b32 s%d, s%d, 8" % (sBO, sW)] + ["v_add_u32 v%d, s%d, v%d" % (vOW[k], sBO, vB[k]) for k in range(2)]
    sc.spread("s", lt, P15, P15 + 4, asap=True)
    lt = ["v_rcp_f32 v%d, v%d" % (vRL[q], LAC[q]) for q in range(4)]
    sc.spread("s", lt, P15 + 7, P15 + 14, asap=True)
    sc.spread("bu", bupd(vBR2), P15 + 8, P15 + 30, asap=True)
    TC = MG(3) + 4
    for n in range(27): res_dma(sc, MG(n), 1)
    for n in range(31):
        g0 = MG(n)
        wv = "m%d" % (n + 2) if n + 2 < 32 else None
        sc.put("w", ("wboth", wv, "r%d" % (n + 1)) if wv else ("wlg", "r%d" % (n + 1)), g0 + GP - 1, g0 + GP - 1, force=True)
        if B2:
            if n == 3:
                sc.maxlg = 2; sc.spread("rb", breads(bB(4), vBR2, 0, "r4"), TC + 1, TC + 3, asap=True); sc.maxlg = 1
            place_reads(sc, ardB(n + 1), None, g0)
            if 5 <= n + 2 < 20:
                if (n + 2) % 4 == 0: sc.spread("rb", bupd(vBR2), g0 + 4, g0 + 8, asap=True)
                sc.spread("rb", breads(bB(n + 2), vBR2, 64 * ((n + 2) % 4), "r%d" % (n + 2)), g0 + 9, g0 + GP - 1, asap=True)
            continue
        b = breads(bB(n + 1), vBR2, 64 * ((n + 1) % 4), "r%d" % (n + 1)) if 4 <= n + 1 < 20 else None
        if n + 1 == 4:
            sc.maxlg = 2; sc.spread("rb", b, TC + 1, TC + 3, asap=True); sc.maxlg = 1; b = None
        place_reads(sc, ardB(n + 1), b, g0)
        if (n + 2) % 4 == 0 and 4 < n + 2 < 20: sc.spread("rd", bupd(vBR2), g0 + 6, g0 + GP - 1, asap=True)
    for n in range(27): place_dma(sc, bdma(n + 5), MG(n))
    if opts.get("cpk", 1):
        pend = []
        for gi in range(17):
            dt, q4 = gi // 4, gi % 4
            if gi < 4: lo = max(P15 + 16 + 5 * gi, sc.pos["s"][0]); hi = P15 + 20 + 5 * gi
            else: lo = MG(dt - 1) + 4 * q4; hi = lo + 3
            t = 32 + 8 * (gi % 2)
            o = OP + 4 * gi
            rd_ = ["v_accvgpr_read_b32 v%d, a%d" % (t + k, 8 * gi + k) for k in range(8)] if gi < 16 else []
            for k, it in enumerate(pend[:4]):
                if q4 == 0: sc.put("s", it, lo + k // 2, lo + k // 2, force=True)
                else: sc.put("s", it, lo, hi)
            if pend: sc.put("ow", pend[4], sc.pos["s"][0] + 1, force=True)
            sc.caps[hi] = 1000
            for it in rd_: sc.put("s", it, lo, hi)
            if gi < 16:
                for k in range(4): sc.put("s", "v_pk_mul_f32 %s, %s, %s op_sel_hi:[1,0]" % (vr(t + 2 * k, 2), vr(t + 2 * k, 2), vr(vRL[q4], 2)), hi, hi, force=True)
            sc.caps[hi] = 8
            pend = ["v_cvt_pk_bf16_f32 v%d, v%d, v%d" % (o + k, t + 2 * k, t + 2 * k + 1) for k in range(4)]
            pend.append(("lg", "ds_write_b128 v%d, %s offset:%d" % (vOW[q4 // 2], vr(o), dt * 64 + (q4 % 2) * RS), "ow"))
    else:
      for dt in range(4):
        cv = []
        for q4 in range(4):
            a0 = 8 * (4 * dt + q4)
            t = 32 + 8 * (q4 % 2)
            o = OP + 16 * dt + 4 * q4
            cv = cv + ["v_accvgpr_read_b32 v%d, a%d" % (t + k, a0 + k) for k in range(8)]
            cv += ["v_mul_f32 v%d, v%d, v%d" % (t + k, t + k, vRL[q4]) for k in range(8)]
            cv += ["v_cvt_pk_bf16_f32 v%d, v%d, v%d" % (o + k, t + 2 * k, t + 2 * k + 1) for k in range(4)]
            cv.append(("lg", "ds_write_b128 v%d, %s offset:%d" % (vOW[q4 // 2], vr(o), dt * 64 + (q4 % 2) * RS), "ow"))
        sc.pour("s", cv, P15 + 14 if dt == 0 else MG(dt - 1), MG(dt) - 1, side="ow")
    sc.put("ow", [("wlg", "ow"), "s_barrier"], TC, TC, force=True)
    vXO, vBO, OLO2, OHI2, vZ2, vFL2, vFO2 = 196, 197, 198, 199, 210, 214, 213
    vRA = [218, 219, 220]
    XV, BV = 132, 140
    def scvt(ps):
        return ["v_cvt_pk_bf16_f32 v%d, v%d, v%d" % (b + k, b + 2 * k, b + 2 * k + 1) for b in range((ACCB if ps else ACCA), (ACCB if ps else ACCA) + 64, 8) for k in range(4)]
    def sst(ps):
        return [("vm", "buffer_store_dwordx4 %s, v%d, %s, s%d offen offset:%d sc1" % (vr((ACCB if ps else ACCA) + 8 * i), vLANE16, sr(SWS),
                 sOS if (i % 4) < 2 else sOS2, ((2 * (i % 4) + i // 4) % 4) * 1024), "s%d" % ps) for i in range(8)]
    fp = scvt(0)
    fp += ["v_bfe_u32 v%d, v%d, 8, 1" % (vBO, vLANE16), "v_lshrrev_b32 v%d, 9, v%d" % (vXO, vLANE16), "v_lshl_add_u32 v%d, v%d, 1, v%d" % (vBO, vBO, vXO),
           "v_lshlrev_b32 v%d, 4, v%d" % (vBO, vBO), "v_and_b32 v%d, 0xf0, v%d" % (vXO, vLANE16), "v_lshl_add_u32 v%d, v%d, 6, v%d" % (vXO, vXO, vBO),
           "v_mov_b32 v%d, 0x3f80" % OLO2, "v_mov_b32 v%d, 0x3f800000" % OHI2, "v_mov_b32 v%d, 0" % vZ2, "v_add_u32 v%d, s%d, v%d" % (vRA[0], sREG, vLANE16),
           "v_and_b32 v%d, 0x70, v%d" % (vFO2, vLANE16), "v_lshrrev_b32 v%d, 1, v%d" % (vFO2, vFO2)]
    fs_ = [
           "s_lshl_b32 s%d, s%d, 3" % (sPOLL, sRC), "s_add_u32 s%d, s%d, s%d" % (sPOLL, sPOLL, sJ), "s_lshl_b32 s%d, s%d, 16" % (sOPF, sPOLL),
           "s_lshl_b32 s%d, s%d, 7" % (sPOLL, sPOLL), "s_add_u32 s%d, s%d, 0x%x" % (sPOLL, sPOLL, F_OFF),
           "s_lshl_b32 s%d, s%d, 11" % (sA, sW), "s_add_u32 s%d, s%d, s%d" % (sOPF, sOPF, sA), "s_add_u32 s%d, s%d, 0x%x" % (sOPF, sOPF, S_OFF),
           "s_mov_b32 s%d, 0x%x" % (sD, f2u(-math.log2(math.e))),
           "s_lshl_b32 s%d, s%d, 3" % (sA, sR), "s_add_u32 s%d, s%d, s%d" % (sA, sA, sJA), "s_lshl_b32 s%d, s%d, 1" % (sE, sW), "s_add_u32 s%d, s%d, 1" % (sE, sE),
           "s_lshl_b32 s%d, s%d, 3" % (sB_, sA), "s_add_u32 s%d, s%d, s%d" % (sB_, sB_, sE), "s_lshl_b32 s%d, s%d, 13" % (sB_, sB_),
           "s_add_u32 s%d, s%d, 0x%x" % (sOS, sB_, S_OFF), "s_add_u32 s%d, s%d, 4096" % (sOS2, sOS),
           "s_lshl_b32 s%d, s%d, 4" % (sC, sA), "s_add_u32 s%d, s%d, s%d" % (sC, sC, sE), "s_lshl_b32 s%d, s%d, 3" % (sC, sC), "s_add_u32 s%d, s%d, 0x%x" % (sC, sC, F_OFF),
           "s_xor_b32 s%d, s%d, 0x88" % (sE, sC), "s_mov_b32 s%d, 0" % sPRE, "s_mov_b32 s%d, 0" % sKSUM,
           "s_lshl_b32 s%d, s%d, 11" % (sA, sW), "v_add_u32 v%d, s%d, v%d" % (221, sA, vLANE16),
           "s_lshl_b32 s%d, s%d, 12" % (sB_, sW), "s_add_u32 s%d, s%d, %d" % (sB_, sB_, BSLOT[2]), ["s_cmp_eq_u32 s%d, 3" % sW, "s_cselect_b32 s%d, %d, s%d" % (sB_, BSLOT[0], sB_)],
           "v_add_u32 v%d, s%d, v%d" % (vRA[1], sB_, vLANE16), "v_add_u32 v%d, %d, v%d" % (vRA[2], 2 * RS, vRA[1]), "s_mov_b32 s%d, 1" % sKD]
    sc.spread("fs", fs_, MG(5), MG(24), asap=True)
    sc.spread("st", fp[32:], MG(12), MG(16), asap=True)
    sc.spread("st", fp[:32], MG(16) + 8, MG(25), asap=True)
    def sflag(ps):
        return [("wvm", "s%d" % ps), "s_mov_b64 exec, 1",
                ("vm", "buffer_store_dwordx2 %s, v%d, %s, s%d offen sc1" % (vr(vTAG, 2), vZ2, sr(SWS), sE if ps else sC), "sflag%d" % ps), "s_mov_b64 exec, -1"]
    poll2 = "buffer_load_dwordx2 %s, v%d, %s, s%d offen sc1" % (vr(vFL2, 2), vFO2, sr(SWS), sPOLL)
    SV_, SS, FBU, XU = 128, 16, 64, 80
    sDONE, sNEW = sKD, sVD
    SEA = opts.get("sea", 0)
    SA0, SA1 = opts.get("sa0", 19 if SEA else 27), opts.get("sa1", 23 if SEA else 31)
    sc.spread("st", sst(0), MG(SA0), MG(SA1), slack=4)
    sc.spread("st", ["s_xor_b32 s%d, s%d, 0x12000" % (sOS, sOS), "s_xor_b32 s%d, s%d, 0x12000" % (sOS2, sOS2)], MG(SA1), sc.n - 1, asap=True)
    if opts.get("ob", 20): sc.put("fx", "s_barrier", MG(opts.get("ob", 20)) + 12, MG(opts.get("ob", 20)) + 12, force=True)
    FX = [BSLOT[2], BSLOT[3], BSLOT[4], BSLOT[0]]
    ov = sc.emit({M0 - 1: stamp, MG(4) - 1: stamp, MG(16) - 1: stamp})
    if opts.get("v"): print("tail/B loads", sc.load[:MG(5)], "overflow", ov)
    stamp()
    assert NE == 0 and (S_OFF & 0x12000) == 0 and (F_OFF & 0x88) == 0
    sARR = sKSUM
    cv1 = scvt(1); st1 = sst(1)
    e("s_cmp_eq_u32 s%d, 0" % sW)
    e("s_cbranch_scc1 L_own")
    for i in range(8):
        g.emit(cv1[4 * i:4 * i + 4]); g.emit(st1[i])
    g.lab("L_ownback")
    for T in range(4):
        for q4 in range(4): e("ds_write_b128 v%d, %s offset:%d" % (vRA[0], ar(192 + 16 * T + 4 * q4), FX[T] + q4 * 1024))
    XV = 96
    for t in range(2): e("ds_read_b128 %s, v%d offset:%d" % (vr(XV + 4 * t), vRA[0], XL + 1024 * t))
    g.emit(sflag(0))
    e("s_waitcnt lgkmcnt(0)")
    for b in (XV, XV + 4): g.emit(swaps(b))
    for k in range(8):
        e("v_lshlrev_b32 v%d, 16, v%d" % (XU + 2 * k, XV + k)); e("v_and_b32 v%d, 0xffff0000, v%d" % (XU + 1 + 2 * k, XV + k))
    stamp(True)
    g.emit(sflag(1))
    stamp(True)
    e(poll2); g.vm.append("spoll0")
    e("s_waitcnt lgkmcnt(0)")
    e("s_barrier")
    for rho in range(4):
        for q4 in range(4):
            e("ds_read_b128 %s, v%d offset:%d" % (vr(16 * rho + 4 * q4), vRA[1 + rho // 2], (rho % 2) * RS + q4 * 1024))
    for rho in range(1, 4):
        e("s_waitcnt lgkmcnt(%d)" % (12 - 4 * rho))
        for k in range(16): e("v_add_f32 v%d, v%d, v%d" % (FBU + k, FBU + k if rho > 1 else k, 16 * rho + k))
    for t in range(2): e("ds_read_b128 %s, v221 offset:%d" % (vr(SV_ + 4 * t), 1024 * t))
    def silu_b():
        for k in range(16): e("v_mul_f32 v%d, s%d, v%d" % (k, sD, FBU + k))
        for k in range(16): e("v_exp_f32 v%d, v%d" % (k, k))
        for k in range(16): e("v_add_f32 v%d, 1.0, v%d" % (k, k))
        for k in range(16): e("v_rcp_f32 v%d, v%d" % (k, k))
        for k in range(16): e("v_mul_f32 v%d, v%d, v%d" % (k, k, FBU + k))
    def ssum(gp):
        for k in range(8):
            src = SV_ + 8 * gp + k
            if gp == 0:
                e("v_lshlrev_b32 v%d, 16, v%d" % (SS + 2 * k, src)); e("v_and_b32 v%d, 0xffff0000, v%d" % (SS + 1 + 2 * k, src))
            else:
                e("v_dot2c_f32_bf16 v%d, v%d, v%d" % (SS + 2 * k, src, OLO2)); e("v_dot2c_f32_bf16 v%d, v%d, v%d" % (SS + 1 + 2 * k, src, OHI2))
    SIL = opts.get("sil", 1)
    if not SIL: silu_b()
    g.emit(("wvm", "spoll0"))
    e("s_branch L_pchk")
    g.lab("L_poll")
    e("s_sleep 1")
    e(poll2)
    e("s_add_u32 s%d, s%d, 1" % (sSPIN, sSPIN))
    e("s_cmp_gt_u32 s%d, 0x%x" % (sSPIN, 1 << 20))
    e("s_cbranch_scc1 L_pdone")
    e("s_call_b64 s[%d:%d], L_side" % (sRET, sRET + 1))
    e("s_waitcnt vmcnt(0)")
    e("s_mov_b32 s%d, s%d" % (sARR, sDONE))
    g.lab("L_pchk")
    e("v_cmp_eq_u64 vcc, %s, %s" % (vr(vFL2, 2), vr(vTAG, 2)))
    e("s_nop 1")
    e("s_andn2_b32 s%d, vcc_lo, s%d" % (sNEW, sDONE))
    e("s_and_b32 s%d, s%d, 0xff" % (sNEW, sNEW))
    e("s_cbranch_scc0 L_poll")
    e("s_or_b32 s%d, s%d, s%d" % (sDONE, sDONE, sNEW))
    for gp in (1, 3, 5, 7, 2, 4, 6):
        e("s_bitcmp1_b32 s%d, %d" % (sNEW, gp))
        e("s_cbranch_scc0 L_sk%d" % gp)
        e("s_add_u32 s%d, s%d, %d" % (sA, sOPF, 8192 * gp))
        for jj in range(2):
            e("buffer_load_dwordx4 %s, v%d, %s, s%d offen offset:%d sc1" % (vr(SV_ + 8 * gp + 4 * jj), vLANE16, sr(SWS), sA, jj * 1024))
        g.lab("L_sk%d" % gp)
    e("s_cmp_lg_u32 s%d, 0xff" % sDONE)
    e("s_cbranch_scc1 L_poll")
    g.lab("L_pdone")
    stamp(True)
    e("s_call_b64 s[%d:%d], L_side" % (sRET, sRET + 1))
    e("s_waitcnt vmcnt(0)")
    e("s_mov_b32 s%d, 0xff" % sARR)
    e("s_call_b64 s[%d:%d], L_side" % (sRET, sRET + 1))
    for gp in (2, 4, 6): ssum(gp)
    e("s_nop 0")
    stamp(True)
    for k in range(16): e("v_fma_f32 v%d, v%d, v%d, v%d" % (k, k, SS + k, XU + k))
    for k in range(8): e("v_cvt_pk_bf16_f32 v%d, v%d, v%d" % (48 + k, 2 * k, 2 * k + 1))
    g.emit(swaps(48)); g.emit(swaps(52))
    for t in range(2):
        e("buffer_store_dwordx4 %s, v%d, %s, s%d offen offset:%d" % (vr(48 + 4 * t), vXO, sr(SOUT), sXO, 64 * t))
    if stamps:
        e("s_waitcnt vmcnt(0)")
        stamp()
        e("s_memrealtime s[90:91]"); e("s_waitcnt lgkmcnt(0)"); e("v_writelane_b32 v%d, s90, 63" % vST)
        e("s_lshl_b32 s%d, s2, 2" % sA)
        e("s_add_u32 s%d, s%d, s%d" % (sA, sA, sW))
        e("s_lshl_b32 s%d, s%d, 8" % (sA, sA))
        e("s_add_u32 s%d, s%d, 0x%x" % (sA, sA, F_OFF + 0x20000))
        e("v_lshrrev_b32 v0, 2, v%d" % vLANE16)
        e("buffer_store_dword v%d, v0, %s, s%d offen" % (vST, sr(SWS), sA))
    g.lab("L_end")
    e("s_endpgm")
    g.lab("L_side")
    if SIL:
        e("s_bitcmp1_b32 s%d, 0" % sPRE)
        e("s_cbranch_scc1 L_side1")
        silu_b()
        e("s_or_b32 s%d, s%d, 1" % (sPRE, sPRE))
        g.lab("L_side1")
    e("s_and_b32 s%d, s%d, 0xaa" % (sA, sARR))
    e("s_and_b32 s%d, s%d, 2" % (sB_, sPRE))
    e("s_lshl_b32 s%d, s%d, 8" % (sB_, sB_))
    e("s_or_b32 s%d, s%d, s%d" % (sA, sA, sB_))
    e("s_cmp_lg_u32 s%d, 0xaa" % sA)
    e("s_cbranch_scc1 L_side2")
    e("s_waitcnt lgkmcnt(0)")
    for gp in (0, 1, 3, 5, 7): ssum(gp)
    e("s_or_b32 s%d, s%d, 2" % (sPRE, sPRE))
    g.lab("L_side2")
    e("s_setpc_b64 s[%d:%d]" % (sRET, sRET + 1))
    g.lab("L_own")
    for i in range(8):
        g.emit(cv1[4 * i:4 * i + 4])
        e("ds_write_b128 v%d, %s offset:%d" % (vLANE16, vr(ACCB + 8 * i), (2 * (i % 4) + i // 4) * 1024))
    e("s_waitcnt vmcnt(0) lgkmcnt(0)")
    e("s_branch L_ownback")
    g.lab("L_codeend")
    g.lab("L_mktag")
    e("s_memrealtime s[%d:%d]" % (sT0, sT0 + 1))
    e("s_waitcnt lgkmcnt(0)")
    e("s_or_b32 s%d, s%d, 1" % (sA, sT0))
    e("v_mov_b32 v120, s%d" % sA)
    e("v_mov_b32 v121, s%d" % (sT0 + 1))
    e("v_mov_b32 v122, 0")
    e("global_store_dwordx2 v122, v[120:121], s[%d:%d] sc1" % (sDBG, sDBG + 1))
    e("s_branch L_notag")
    def spin(lab, back, load, cmp):
        g.lab(lab)
        e("s_sleep 1")
        for x in load: e(x)
        e("s_add_u32 s%d, s%d, 1" % (sSPIN, sSPIN))
        e("s_cmp_gt_u32 s%d, 0x%x" % (sSPIN, 1 << 20))
        e("s_cbranch_scc1 %s" % back)
        e("s_waitcnt vmcnt(0)")
        e(cmp)
        e("s_cbranch_vccnz %s" % lab)
        e("s_branch %s" % back)
    spin("L_tagwait", "L_tagok", ["global_load_dwordx2 %s, v%d, s[%d:%d] sc1" % (vr(vTAG, 2), vZ, sDBG, sDBG + 1)], "v_cmp_eq_u32 vcc, 0, v%d" % vTAG)
    spin("L_hwait", "L_hok", [poll], cmpf)
    for n, p in rare_sites.items():
        g.lab("L_rare%s" % n)
        e("s_call_b64 s[%d:%d], L_resc%d" % (sRET, sRET + 1, p))
        e("s_branch L_back%s" % n)
    for p in range(2):
        g.lab("L_resc%d" % p)
        e("s_nop 7"); e("s_nop 3")
        D = [ONES + k for k in range(4)]; FCT = [vT + 2, vT + 3, vT + 4, vT + 5]
        g.emit(rowmax(p, D))
        g.emit(allreduce("v_max_f32", D, FCT, lambda: []))
        for q in range(4): e("v_add_f32 v%d, 0x%x, v%d" % (D[q], f2u(SHIFT), D[q]))
        for q in range(4): e("v_max_f32 v%d, 0, v%d" % (D[q], D[q]))
        for q in range(4): e("v_ceil_f32 v%d, v%d" % (D[q], D[q]))
        for q in range(4): e("v_exp_f32 v%d, -v%d" % (FCT[q], D[q]))
        for q in range(4):
            for k in range(8):
                e("v_sub_f32 v%d, v%d, v%d" % (S(0) + 8 * q + k, S(0) + 8 * q + k, D[q]))
                e("v_sub_f32 v%d, v%d, v%d" % (S(1) + 8 * q + k, S(1) + 8 * q + k, D[q]))
            for k in range(4):
                e("v_sub_f32 v%d, v%d, v%d" % (NM(q) + k, NM(q) + k, D[q]))
                e("v_mul_f32 v%d, v%d, v%d" % (LAC[q] + k, LAC[q] + k, FCT[q]))
        for f in range(8):
            for q in range(4):
                a0 = OA(f, q)
                for k in range(4): e("v_accvgpr_read_b32 v%d, a%d" % (D[k], a0 + k))
                for k in range(4): e("v_mul_f32 v%d, v%d, v%d" % (D[k], D[k], FCT[q]))
                for k in range(4): e("v_accvgpr_write_b32 a%d, v%d" % (a0 + k, D[k]))
        for q in range(4):
            for k in range(4):
                r = P(1 - p, q) + k
                e("v_lshlrev_b32 v%d, 16, v%d" % (vT, r)); e("v_and_b32 v%d, 0xffff0000, v%d" % (vT + 1, r))
                e("v_mul_f32 v%d, v%d, v%d" % (vT, vT, FCT[q])); e("v_mul_f32 v%d, v%d, v%d" % (vT + 1, vT + 1, FCT[q]))
                e("v_cvt_pk_bf16_f32 v%d, v%d, v%d" % (r, vT, vT + 1))
        for k in range(4): e("v_mov_b32 v%d, 0x3f803f80" % (ONES + k))
        for x in sm_flat(p): e(x)
        e("s_nop 1")
        e("s_setpc_b64 s[%d:%d]" % (sRET, sRET + 1))
    g.L += ['.section .rodata,"a"', ".p2align 6", ".amdhsa_kernel " + KNAME,
            "  .amdhsa_next_free_vgpr 512", "  .amdhsa_next_free_sgpr 102", "  .amdhsa_accum_offset 256",
            "  .amdhsa_group_segment_fixed_size 0", "  .amdhsa_kernarg_size 104", "  .amdhsa_user_sgpr_count 2",
            "  .amdhsa_user_sgpr_kernarg_segment_ptr 1", "  .amdhsa_system_sgpr_workgroup_id_x 1", ".end_amdhsa_kernel"]
    return "\n".join(g.L) + "\n"

if __name__ == "__main__":
    opts = {}
    out = "recurrent_scan__sliding_block_cached__dense_activation_squared_relu__prompt.s"
    for a in sys.argv[1:]:
        if a.startswith("-o"): out = a[2:]
        elif "=" in a:
            k, v = a.split("="); opts[k] = int(v)
        else: opts[a] = True
    open(out, "w").write(gen(opts))
```

```python
import sys, struct, math, re

KNAME = "recurrent_scan__sliding_block_cached__dense_activation_squared_relu__prompt_kernel"
RS = 40960
XROW = 1040
RSL = [20480, 24576, 28672, 32768, 36864]
def aslot(n): return RSL[(n - 43) % 5]
K0S, KA, VA, KB, VB = 16640, 20992, 25344, 29440, 33792
BSLOT = [16640, 20736, 24832, 28928, 33024]
S_OFF = 8 << 20
F_OFF = 24 << 20
HF_OFF = F_OFF + 65536
WS_SIZE = 25 << 20

def f2u(x): return struct.unpack("<I", struct.pack("<f", x))[0]

def cls_cost(it):
    if isinstance(it, list):
        cc = [cls_cost(x) for x in it]
        return (0 if all(x[0] == 0 for x in cc) else 3, sum(x[1] for x in cc))
    if isinstance(it, tuple):
        if it[0] == "vm": return (1, 8)
        if it[0] == "lg": return (1, 4)
        return (0, 4)
    s = it.strip()
    if s.endswith(":"): return (3, 0)
    m = s.split()[0]
    if m in ("v_exp_f32", "v_rcp_f32", "v_sqrt_f32", "v_rsq_f32") or m.startswith("v_pk_"): return (2, 8)
    if m.startswith("v_"): return (2, 4)
    if m == "s_nop": return (2, 4 * (int(s.split()[1]) + 1))
    if m in ("s_waitcnt", "s_barrier") or m.startswith("s_cbranch"): return (3, 4)
    return (0, 4)

class Sched:
    def __init__(self, g, mf, cap=None):
        self.g = g; self.mf = mf; self.n = len(mf)
        self.base = [8 if "16x16" in m else 24 for m in mf]
        self.caps = list(self.base) if cap is None else [cap] * self.n
        self.slots = [[] for _ in mf]; self.load = [0] * self.n; self.nvm = [0] * self.n; self.nlg = [0] * self.n
        self.nsa = [0] * self.n; self.resv = [0] * self.n
        self.pos = {}; self.seq = 0; self.maxlg = 1
    def reserve(self, gap, c): self.load[gap] += c; self.resv[gap] += c
    def put(self, sid, it, lo, hi=None, force=False, slack=None):
        if hi is None: hi = self.n - 1
        c, cost = cls_cost(it)
        isvm = isinstance(it, tuple) and it[0] == "vm"
        islg = isinstance(it, tuple) and it[0] == "lg"
        pg, pc = self.pos.get(sid, (-1, 0))
        start = max(lo, pg if (pc <= c and not (isvm and pc == 0)) else pg + 1)
        assert start <= hi, ("window", sid, it, lo, hi, pg)
        if slack is not None: hi = min(hi, max(start, lo + slack))
        def eff(t):
            if c == 0 and self.nsa[t] == 0 and not self.nvm[t] and not self.resv[t]: return cost - 4
            if isvm and self.nsa[t]: return cost + 4
            return cost
        def full(t):
            if c == 0 and eff(t) == cost and t < hi and not force: return True
            return self.load[t] + eff(t) > self.caps[t] or (isvm and self.nvm[t]) or (islg and self.base[t] == 8 and self.nlg[t] >= self.maxlg)
        t = start
        if not force:
            while t <= hi and full(t): t += 1
            if t > hi:
                t = min(range(start, hi + 1), key=lambda x: (self.load[x] + eff(x) - self.caps[x] + (8 if isvm and self.nvm[x] else 0), x))
        self.slots[t].append((c, self.seq, it)); self.seq += 1
        self.load[t] += eff(t); self.nvm[t] += isvm; self.nlg[t] += islg; self.nsa[t] += (c == 0)
        self.pos[sid] = (t, c)
        return t
    def spread(self, sid, items, lo, hi, asap=False, slack=None):
        m = len(items)
        for k, it in enumerate(items):
            tgt = lo if asap else lo + (k * (hi + 1 - lo)) // m
            self.put(sid, it, min(tgt, hi), hi if slack is None else min(self.n - 1, hi + 4), slack=slack)
    def level(self, sid, items, lo, hi, side=None):
        tot = sum(cls_cost(x)[1] for x in items)
        ex = 0
        while sum(max(0, self.base[i] + ex - self.load[i]) for i in range(lo, hi + 1)) < tot + 4 * (1 + len([x for x in items if cls_cost(x)[1] > 4]) // 2): ex += 4
        save = self.caps[lo:hi + 1]
        for i in range(lo, hi + 1): self.caps[i] = self.base[i] + ex
        for it in items:
            if side and isinstance(it, tuple): self.put(side, it, self.pos[sid][0] + 1, force=True)
            else: self.put(sid, it, lo, hi)
        self.caps[lo:hi + 1] = save
    def pour(self, sid, items, lo, hi, side=None):
        if sid in self.pos: lo = max(lo, self.pos[sid][0] + (1 if self.pos[sid][1] > 2 else 0))
        tot = sum(cls_cost(x)[1] for x in items)
        n = hi + 1 - lo
        free = sum(max(0, self.base[i] - self.load[i]) for i in range(lo, hi + 1))
        extra = max(0.0, (tot - free) / float(n))
        scale = min(1.0, tot / float(free)) if free else 1.0
        g = lo; credit = 0.0
        credit += max(0, self.base[g] - self.load[g]) * scale + extra
        for it in items:
            c = cls_cost(it)[1]
            if side and isinstance(it, tuple):
                self.put(side, it, min(g + 1, self.n - 1), force=True); credit -= c; continue
            while g < hi and (credit < c * 0.5 or (extra == 0 and self.load[g] + c > self.base[g])):
                g += 1; credit += max(0, self.base[g] - self.load[g]) * scale + extra
            t = self.put(sid, it, g, max(hi, g), force=True)
            while g < t:
                g += 1; credit += max(0, self.base[g] - self.load[g] + (c if g == t else 0)) * scale + extra
            credit -= c
    def softmax(self, sid, exps, smalls, nt, lo, hi):
        if sid in self.pos: lo = max(lo, self.pos[sid][0] + (1 if self.pos[sid][1] > 2 else 0))
        def plan(allow):
            ie = 0; js = 0; freed = 0; out = []; credit = 0.0
            done_prev = 0
            for gp in range(lo, hi + 1):
                free = self.base[gp] - self.load[gp]
                credit += allow
                done_prev = ie
                while True:
                    can_e = ie < len(exps) and ie < freed + nt
                    can_s = js < len(smalls) and smalls[js][1] <= done_prev
                    ce = cls_cost(exps[ie])[1] if can_e else 0
                    cs = cls_cost(smalls[js][0])[1] if can_s else 0
                    pick = None
                    if can_e and free >= ce: pick = "e"
                    elif can_s and free >= cs: pick = "s"
                    elif can_e and free > 0 and credit >= ce - free: pick = "e"
                    elif can_s and credit >= 2 * (cs - max(free, 0)): pick = "s"
                    elif can_e and credit >= 2 * (ce - max(free, 0)): pick = "e"
                    if pick is None: break
                    c = ce if pick == "e" else cs
                    if c > free: credit -= c - max(free, 0)
                    free -= c
                    if pick == "e": out.append((gp, exps[ie])); ie += 1
                    else:
                        out.append((gp, smalls[js][0])); freed = max(freed, smalls[js][2]); js += 1
                        if cls_cost(out[-1][1])[0] == 3: break
            return out if (ie == len(exps) and js == len(smalls)) else None
        allow = 0.0
        while True:
            out = plan(allow)
            if out: break
            allow += 0.25
            assert allow < 64
        for gp, it in out:
            if isinstance(it, list) and cls_cost(it)[0] == 3 and not any("cbranch" in x for x in it):
                for x in it: self.put(sid, x, gp, gp, force=True)
            else: self.put(sid, it, gp, gp, force=True)
        return out[-1][0]
    def emit(self, marks=None):
        for i in range(self.n):
            self.g.emit(self.mf[i])
            tags = {x[2][2] for x in self.slots[i] if isinstance(x[2], tuple) and x[2][0] in ("vm", "lg")}
            for c, _, it in self.slots[i]:
                if c == 0 and isinstance(it, tuple):
                    want = set()
                    for t in it[1:]: want |= set(t) if isinstance(t, (list, tuple)) else {t}
                    assert not (want & tags), ("wait before its ops", it, tags)
            for _, _, it in sorted(self.slots[i], key=lambda x: (x[0], x[1])): self.g.emit(it)
            if marks and i in marks: marks[i]()
        return sum(max(0, l - b) for l, b in zip(self.load, self.base))

class G:
    def __init__(self, opts):
        self.L = []; self.o = opts; self.vm = []; self.lg = []
    def e(self, s): self.L.append(s if s.endswith(":") else "    " + s)
    def lab(self, s): self.L.append(s + ":")
    def emit(self, it):
        if isinstance(it, str): self.e(it); return
        if isinstance(it, list):
            for x in it: self.emit(x)
            return
        kind = it[0]
        if kind == "vm": self.e(it[1]); self.vm.append(it[2])
        elif kind == "lg": self.e(it[1]); self.lg.append(it[2])
        elif kind == "wvm": self.e("s_waitcnt vmcnt(%d)" % self.cnt(self.vm, it[1], 63))
        elif kind == "wlg": self.e("s_waitcnt lgkmcnt(%d)" % self.cnt(self.lg, it[1], 15))
        elif kind == "wboth":
            self.e("s_waitcnt vmcnt(%d) lgkmcnt(%d)" % (self.cnt(self.vm, it[1], 63), self.cnt(self.lg, it[2], 15)))
        else: raise ValueError(kind)
    def cnt(self, lst, tags, mx):
        if not isinstance(tags, (list, tuple)): tags = [tags]
        last = -1
        for t in tags:
            idx = [i for i, x in enumerate(lst) if x == t]
            assert idx, "tag %r never issued" % (t,)
            last = max(last, idx[-1])
        return min(len(lst) - 1 - last, mx)

def vr(b, n=4): return "v[%d:%d]" % (b, b + n - 1)
def ar(b, n=4): return "a[%d:%d]" % (b, b + n - 1)
def sr(b, n=4): return "s[%d:%d]" % (b, b + n - 1)
def mfma(d, a, b, c): return "v_mfma_f32_32x32x16_bf16 %s, %s, %s, %s" % (d, a, b, c)
def mfma16(d, a, b, c): return "v_mfma_f32_16x16x32_bf16 %s, %s, %s, %s" % (d, a, b, c)

sW, sR, sG, sREG = 3, 4, 5, 8
sRC, sJ = sR, sG
sJA, sPRE = 6, 7
sA, sB_, sC, sD, sE = 9, 10, 11, 12, 13
sP, sOPF, sOK, sOV, sOM, sOH, sOS = 14, 15, 16, 17, 18, 19, 20
sKD, sKSUM, sVD, sVSUM, sKR, sVR, sK0, sBO, sOH2, sOS2, sXO = 21, 22, 23, 24, 25, 26, 27, 28, 29, 30, 31
sCNT, sBIG, sRET = 32, 33, 34
sT0 = 36
sDBG = 38
sSPIN, sOW2, sPB = 40, 41, 42
SX, SWQ, SW1, SK, SV, SWO, SW2, SWS, SOUT, SB1, SB2 = 44, 48, 52, 56, 60, 64, 68, 72, 76, 80, 84
sIDX, sB2O, sU, sINV, sPOLL, sF = 88, 89, 92, 93, 94, 95
vLANE16 = 192; vL128 = 193; vB = [194, 195]
vWQ = [196, 197, 198, 199]; vW1 = [200, 201, 202, 203]
vWO = [204, 205, 208, 209]; vTW = [206, 207]
vKD = 208; vVD = [209, 210]; vKR = [211, 212]; vVR = [[213, 214], [215, 223]]
vTAG = 216
vRS = [218, 219, 220, 221]
LAC = [184, 188, 196, 218]; ONES = 200; vOR = 230; vDUM = 231; NT = 6
SHIFT = 16.0
vST = 222
vT = 224; AF = 224
GP = 16

def gen(opts):
    g = G(opts); e = g.e
    GG = opts.get("G", 2)
    stamps = opts.get("stamps", False)
    nst = [0]
    def stamp(fine=False):
        if stamps and not opts.get("light") and (not fine or opts.get("fine")):
            i = nst[0]; nst[0] += 1
            e("s_memtime s[90:91]"); e("s_memrealtime s[96:97]"); e("s_waitcnt lgkmcnt(0)")
            e("v_writelane_b32 v%d, s90, %d" % (vST, i)); e("v_writelane_b32 v%d, s96, %d" % (vST, 32 + i))
    hdr = open("recurrent_scan__sliding_block_cached__dense_activation_squared_relu__prompt.s.ref").read().split("\n")
    for ln in hdr:
        if ln.startswith("; @launch"): break
        g.L.append(ln)
    g.L.append("; @launch grid=(256,1,1) block=(256,1,1) lds=163840")
    g.L += ['.amdgcn_target "amdgcn-amd-amdhsa--gfx950"', ".text", ".globl " + KNAME, ".p2align 8", ".type %s,@function" % KNAME]
    g.lab(KNAME)
    e("s_cmp_ge_u32 s2, 256")
    e("s_cbranch_scc1 L_end")
    e("s_getpc_b64 s[%d:%d]" % (sPB, sPB + 1))
    g.lab("L_pc")
    CPF = opts.get("cpf", 2)
    if CPF == 2:
        e("s_and_b32 s%d, s2, 8" % sB_)
        e("s_lshl_b32 s%d, s%d, 12" % (sB_, sB_))
        e("v_lshl_add_u32 v66, v0, 7, s%d" % sB_)
    elif CPF == 3:
        e("s_and_b32 s%d, s2, 0x38" % sB_)
        e("s_lshl_b32 s%d, s%d, 10" % (sB_, sB_))
        e("v_and_b32 v66, 0xfc, v0")
        e("v_lshl_add_u32 v66, v66, 5, s%d" % sB_)
    if CPF:
        e("v_min_u32 v66, L_codeend-L_pc-4, v66")
        g.emit(("vm", "global_load_dword v66, v66, s[%d:%d]" % (sPB, sPB + 1), "cpf"))
    for d, off in ((SX, 0), (SW1, 48), (SWQ, 24), (SK, 8), (SV, 16), (SWO, 32), (SB1, 56), (SW2, 64), (SB2, 72), (SOUT, 80), (sDBG, 88), (SWS, 96)):
        e("s_load_dwordx2 s[%d:%d], s[0:1], %d" % (d, d + 1, off))
    if stamps:
        e("v_mov_b32 v%d, 0" % vST); e("s_memtime s[90:91]"); e("s_memrealtime s[96:97]")
    L0 = 64
    e("v_lshrrev_b32 v65, 6, v0")
    e("v_and_b32 v%d, 63, v0" % L0)
    e("v_readfirstlane_b32 s%d, v65" % sW)
    e("s_lshr_b32 s%d, s2, 3" % sIDX)
    e("s_and_b32 s%d, s2, 7" % sE)
    lg = {1: 0, 2: 1, 4: 2, 8: 3}[GG]
    e("s_lshr_b32 s%d, s%d, %d" % (sP, sIDX, lg))
    e("s_lshr_b32 s%d, s%d, %d" % (sB_, sE, 3 - lg))
    e("s_lshl_b32 s%d, s%d, %d" % (sB_, sB_, 5 - lg))
    e("s_add_u32 s%d, s%d, s%d" % (sR, sB_, sP))
    vXL, vXW = 67, 68
    e("v_lshrrev_b32 v65, 3, v%d" % L0)
    e("v_and_b32 v69, 7, v%d" % L0)
    e("v_lshlrev_b32 v%d, 10, v65" % vXL)
    e("v_lshl_or_b32 v%d, v69, 4, v%d" % (vXL, vXL))
    e("s_lshl_b32 s%d, s%d, 2" % (sA, sR))
    e("s_add_u32 s%d, s%d, s%d" % (sA, sA, sW))
    e("s_lshl_b32 s%d, s%d, 14" % (sA, sA))
    e("s_add_u32 s%d, s%d, 8192" % (sB_, sA))
    for d, size in ((SX, 2048 * 512 * 2), (SW1, 512 * 1792 * 2), (SWQ, 512 * 4096 * 2), (SK, 0x20000), (SV, 0x20000), (SWO, 0x80000),
                    (SB1, 1792 * 2), (SW2, 1792 * 512 * 2), (SB2, 1024), (SOUT, 2048 * 512 * 2), (SWS, WS_SIZE)):
        e("s_mov_b32 s%d, 0x%x" % (d + 2, size)); e("s_mov_b32 s%d, 0x20000" % (d + 3))
    e("s_waitcnt lgkmcnt(0)")
    if stamps:
        e("v_writelane_b32 v%d, s90, 0" % vST); e("v_writelane_b32 v%d, s96, 62" % vST); e("v_writelane_b32 v%d, s96, 32" % vST); nst[0] = 1
    XR = 0
    for i in range(16):
        rg, cb = i // 8, i % 8
        g.emit(("vm", "buffer_load_dwordx4 %s, v%d, %s, s%d offen offset:%d" % (vr(XR + 4 * i), vXL, sr(SX), sB_ if rg else sA, cb * 128), "x%d" % i))
    stamp(True)
    e("v_lshlrev_b32 v%d, 7, v%d" % (vL128, L0))
    e("s_and_b32 s%d, s%d, %d" % (sB_, sE, 8 // GG - 1))
    e("s_lshl_b32 s%d, s%d, %d" % (sB_, sB_, lg))
    e("s_and_b32 s%d, s%d, %d" % (sC, sIDX, GG - 1))
    e("s_add_u32 s%d, s%d, s%d" % (sG, sB_, sC))
    e("s_mul_i32 s%d, s%d, %d" % (sREG, sW, RS))
    e("v_mul_u32_u24 v70, %d, v65" % XROW)
    e("v_add_u32 v70, s%d, v70" % sREG)
    e("v_lshl_add_u32 v%d, v69, 4, v70" % vXW)
    H, R_, C_, T4, T2 = 71, 72, 73, 74, 75
    e("v_lshrrev_b32 v%d, 5, v%d" % (H, L0))
    e("v_bfe_u32 v%d, v%d, 2, 2" % (R_, L0))
    e("v_and_b32 v%d, 3, v%d" % (C_, L0))
    e("v_lshrrev_b32 v%d, 4, v%d" % (T4, L0))
    e("v_and_b32 v%d, 1, v%d" % (T2, T4))
    e("v_lshlrev_b32 v76, 6, v%d" % T2)
    e("v_lshl_or_b32 v76, v%d, 4, v76" % C_)
    e("v_lshl_add_u32 v77, v%d, 2, v%d" % (H, R_))
    e("s_lshr_b32 s%d, s%d, 1" % (sA, sG))
    e("s_mul_i32 s%d, s%d, 7" % (sU, sA))
    e("s_and_b32 s%d, s%d, 1" % (sA, sG))
    e("s_lshl_b32 s%d, s%d, 2" % (sA, sA))
    e("s_add_u32 s%d, s%d, s%d" % (sA, sA, sW))
    e("s_add_u32 s%d, s%d, s%d" % (sU, sU, sA))
    e("s_cmp_eq_u32 s%d, 7" % sA)
    e("s_cselect_b32 s%d, 0x40000000, 0" % sINV)
    e("v_mul_u32_u24 v78, 3584, v77")
    e("v_add3_u32 v%d, v78, v76, s%d" % (vW1[0], sINV))
    def dmaoffs(vo, stride):
        st = 8 * stride - 1024
        return ["v_xor_b32 v%d, 32, v%d" % (vo[1], vo[0]), "v_add_u32 v%d, %d, v%d" % (vo[1], st, vo[1]),
                "v_add_u32 v%d, %d, v%d" % (vo[2], 2 * st, vo[0]), "v_add_u32 v%d, %d, v%d" % (vo[3], 2 * st, vo[1])]
    g.emit(dmaoffs(vW1, 3584))
    RG = opts.get("rg", 1); lrg = {1: 0, 2: 1, 4: 2}[RG]
    e("s_and_b32 s%d, s%d, %d" % (sK0, sP, 16 // RG - 1))
    e("s_lshl_b32 s%d, s%d, 7" % (sOH, sU))
    e("s_mul_i32 s%d, s%d, %d" % (sOM, sK0, RG * 32 * 3584))
    e("s_add_u32 s%d, s%d, s%d" % (sOM, sOM, sOH))
    e("s_lshl_b32 s%d, s%d, %d" % (sBO, sK0, 6 + lrg))
    W1TOT = 512 * 3584
    def adma(n):
        ps = n // 16
        srdn, vo = (SW1, vW1) if ps == 0 else (SWQ, vWQ)
        pre = ["s_add_u32 m0, s%d, %d" % (sREG, aslot(n))]
        if n == 16: pre += ["s_mov_b32 s%d, s%d" % (sOM, sF)]
        elif n > 16:
            pre += ["s_add_u32 s%d, s%d, %d" % (sOM, sOM, (1 << 18) + (128 if n == 32 else 0))]
            if n % RG == 0: pre += ["s_and_b32 s%d, s%d, 0x3fffff" % (sOM, sOM)]
        elif n > 0:
            pre += ["s_add_u32 s%d, s%d, %d" % (sOM, sOM, 32 * 3584)]
            if n % RG == 0: pre += [["s_cmp_ge_u32 s%d, %d" % (sOM, W1TOT), "s_cselect_b32 s%d, s%d, s%d" % (sOM, sOH, sOM)]]
        else: pre.append("s_nop 0")
        return pre + [("vm", "buffer_load_dwordx4 v%d, %s, s%d offen offset:%d lds" % (vo[b], sr(srdn), sOM, b * 1024), "m%d" % n) for b in range(4)]
    vTA = vVR[0]
    e("v_lshlrev_b32 v78, 3, v%d" % C_)
    e("v_lshl_or_b32 v78, v%d, 6, v78" % R_)
    e("v_lshl_or_b32 v78, v%d, 5, v78" % T2)
    e("v_lshl_add_u32 v79, v%d, 10, v78" % T4)
    e("v_add_u32 v%d, s%d, v79" % (vTA[0], sREG))
    e("v_xor_b32 v%d, 32, v%d" % (vTA[1], vTA[0]))
    e("v_and_b32 v80, 15, v%d" % L0)
    e("v_mul_u32_u24 v81, %d, v80" % XROW)
    e("v_lshl_add_u32 v%d, v%d, 4, v81" % (vB[0], T4))
    e("v_add_u32 v%d, %d, v%d" % (vB[1], 2 * RS, vB[0]))
    vBR = [110, 111]
    for k in range(2): e("v_add_u32 v%d, s%d, v%d" % (vBR[k], sBO, vB[k]))
    e("v_add_u32 v89, %d, v81" % (2 * RS))
    late = []
    a = late.append
    a("v_lshl_add_u32 v%d, v77, 13, v76" % vWQ[0]); late += dmaoffs(vWQ, 8192)
    a("v_lshlrev_b32 v82, 3, v%d" % T4)
    a("v_lshl_add_u32 v%d, v77, 10, v76" % vWO[0])
    a("v_lshlrev_b32 v76, 5, v%d" % H)
    a("v_xor_b32 v%d, v76, v%d" % (vWO[0], vWO[0]))
    a("v_add_u32 v%d, %d, v%d" % (vWO[1], 8192 - 1024, vWO[0]))
    a("v_lshl_add_u32 v76, v%d, 9, v78" % T4)
    a("v_add_u32 v%d, s%d, v76" % (vTW[0], sREG))
    a("v_xor_b32 v%d, 32, v%d" % (vTW[1], vTW[0]))
    a("v_lshlrev_b32 v%d, 4, v%d" % (vLANE16, L0))
    a("v_lshlrev_b32 v76, 6, v%d" % T4)
    a("v_lshl_or_b32 v76, v%d, 4, v76" % C_)
    a("v_lshl_add_u32 v%d, v%d, 8, v76" % (vVD[0], R_))
    a("v_xor_b32 v%d, 32, v%d" % (vVD[1], vVD[0]))
    a("v_add_u32 v%d, %d, v79" % (vVR[1][0], VA + 2 * RS))
    a("v_xor_b32 v%d, 32, v%d" % (vVR[1][1], vVR[1][0]))
    a("v_xor_b32 v77, v80, v%d" % T4)
    a("v_lshlrev_b32 v77, 4, v77")
    a("v_lshl_or_b32 v%d, v%d, 8, v77" % (vKD, T4))
    a("v_lshl_add_u32 v76, v%d, 1, v%d" % (T2, H))
    a("v_xor_b32 v76, v76, v%d" % C_)
    a("v_mul_u32_u24 v77, 1088, v%d" % R_)
    a("v_lshl_add_u32 v77, v%d, 8, v77" % C_)
    a("v_lshl_add_u32 v%d, v76, 4, v77" % vKR[0])
    a("v_add_u32 v%d, %d, v%d" % (vKR[1], 2 * RS, vKR[0]))
    assert (VA & 32) == 0 and (VB & 32) == 0
    lates = []
    a = lates.append
    a("s_lshl_b32 s%d, s%d, 10" % (sF, sG)); a("s_lshl_b32 s%d, s%d, 8" % (sA, sW)); a("s_add_u32 s%d, s%d, s%d" % (sF, sF, sA))
    a("s_lshl_b32 s%d, s%d, %d" % (sA, sK0, 18 + lrg)); a("s_add_u32 s%d, s%d, s%d" % (sF, sF, sA))
    a("s_lshl_b32 s%d, s%d, %d" % (sOV, sP, 14 + (1 if GG == 8 else 0)))
    a("s_lshl_b32 s%d, s%d, 12" % (sA, sW)); a("s_add_u32 s%d, s%d, s%d" % (sOV, sOV, sA))
    a("s_sub_u32 s%d, s%d, %d" % (sOK, sOV, 32 * 256))
    a("s_and_b32 s%d, s%d, 0x1ffff" % (sOV, sOV)); a("s_and_b32 s%d, s%d, 0x1ffff" % (sOK, sOK))
    a("s_mov_b32 s%d, 0x40004000" % sBIG); a("s_mov_b32 s%d, 0" % sSPIN)
    e("s_lshl_b32 s%d, s%d, 19" % (sA, sG))
    e("s_add_u32 s%d, s%d, s%d" % (SWO, SWO, sA)); e("s_addc_u32 s%d, s%d, 0" % (SWO + 1, SWO + 1))
    e("s_add_u32 s%d, s%d, %d" % (sA, sA, 1536 * 256))
    for d in (SK, SV): e("s_add_u32 s%d, s%d, s%d" % (d, d, sA)); e("s_addc_u32 s%d, s%d, 0" % (d + 1, d + 1))
    e("s_lshl_b32 s%d, s%d, 2" % (sE, sP)); e("s_add_u32 s%d, s%d, s%d" % (sE, sE, sW))
    e("s_lshl_b32 s%d, s%d, %d" % (sOPF, sE, 12 + lg))
    e("s_lshl_b32 s%d, s%d, %d" % (sE, sE, 10 + lg))
    e("v_and_b32 v84, 0x%x, v%d" % (1024 * GG - 128, vL128))
    e("s_or_b32 s%d, s2, s%d" % (sA, sW))
    e("s_cmp_lg_u32 s%d, 0" % sA)
    e("s_cbranch_scc0 L_mktag")
    g.lab("L_notag")
    ONE, OLO, OHI = 86, 87, 88
    SUM = [90, 91, 92, 93]; SQ = [94, 95, 96, 97]
    e("v_mov_b32 v%d, 0x3f803f80" % ONE); e("v_mov_b32 v%d, 0x3f80" % OLO); e("v_mov_b32 v%d, 0x3f800000" % OHI)
    for x in SUM + SQ: e("v_mov_b32 v%d, 0" % x)
    e("s_mov_b32 s%d, 0x%x" % (sC, f2u(1.0 / 512)))
    e("s_mov_b32 s%d, 0x%x" % (sD, f2u(1e-5)))
    NEGM = [98, 99]
    dq = []
    for n in range(5):
        a_ = adma(n)
        k = [i for i, x in enumerate(a_) if isinstance(x, tuple)][0]
        dq += [a_[:k + 1]] + [[x] for x in a_[k + 1:]]
    dq += [[("vm", "buffer_load_dword v85, v84, %s, s%d offen" % (sr(srd_), sE), "pf")] for srd_ in (SK, SV)]
    EB = opts.get("eb", 1); BIAS = 112
    if EB:
        dq[-1] += ["v_lshlrev_b32 v82, 3, v%d" % T4, "v_mov_b32 v%d, 0" % vTAG] + \
                  [("vm", "buffer_load_dwordx2 %s, v82, %s, s%d offen offset:%d" % (vr(BIAS + 2 * mt, 2), sr(SB1), sOH, 32 * mt), "b1") for mt in range(4)] + \
                  [("vm", "global_load_dwordx2 %s, v%d, s[%d:%d] sc1" % (vr(vTAG, 2), vTAG, sDBG, sDBG + 1), "tag")]
    for _ in range(opts.get("early", 0)): g.emit(dq.pop(0))
    stamp(True)
    for rg in range(2):
        for i in range(8 * rg, 8 * rg + 8):
            g.emit(("wvm", "x%d" % i))
            for d in range(4):
                x = XR + 4 * i + d
                e("v_dot2c_f32_bf16 v%d, v%d, v%d" % (SUM[2 * rg + d % 2], x, ONE))
                e("v_dot2c_f32_bf16 v%d, v%d, v%d" % (SQ[2 * rg + d % 2], x, x))
            for _ in range(opts.get("dst", 1)):
                if len(dq) > opts.get("keep", 0): g.emit(dq.pop(0))
        stamp(True)
        m, q = SUM[2 * rg], SQ[2 * rg]
        e("s_nop 2")
        e("v_add_f32 v%d, v%d, v%d" % (m, m, m + 1))
        e("v_add_f32 v%d, v%d, v%d" % (q, q, q + 1))
        for pat in ("quad_perm:[1,0,3,2]", "quad_perm:[2,3,0,1]", "row_half_mirror"):
            e("s_nop 0")
            for x in (m, q): e("v_add_f32_dpp v%d, v%d, v%d %s row_mask:0xf bank_mask:0xf" % (x, x, x, pat))
        e("v_mul_f32 v%d, s%d, v%d" % (m, sC, m))
        e("v_cvt_pk_bf16_f32 v100, v%d, v%d" % (m, m))
        e("v_and_b32 v100, 0xffff0000, v100")
        e("v_xor_b32 v%d, 0x80000000, v100" % NEGM[rg])
        for i in range(8 * rg, 8 * rg + 8):
            cb = i % 8
            for d in range(4):
                x = XR + 4 * i + d
                e("v_dot2_f32_bf16 v%d, v%d, v%d, v%d" % (102 + 2 * d, x, OLO, NEGM[rg]))
                e("v_dot2_f32_bf16 v%d, v%d, v%d, v%d" % (103 + 2 * d, x, OHI, NEGM[rg]))
            for d in range(4):
                e("v_cvt_pk_bf16_f32 v%d, v%d, v%d" % (XR + 4 * i + d, 102 + 2 * d, 103 + 2 * d))
            e("ds_write_b128 v%d, %s offset:%d" % (vXW, vr(XR + 4 * i), rg * 8 * XROW + cb * 128))
            if rg and len(dq) > max(2, opts.get("keep", 0)): g.emit(dq.pop(0))
        stamp(True)
    while dq: g.emit(dq.pop(0))
    for rg in range(2):
        m, q = SUM[2 * rg], SQ[2 * rg]
        e("v_mul_f32 v%d, s%d, v%d" % (q, sC, q))
        e("v_fma_f32 v%d, -v%d, v%d, v%d" % (q, m, m, q))
        e("v_max_f32 v%d, 0, v%d" % (q, q))
    e("v_cvt_pk_bf16_f32 v100, v%d, v%d" % (SQ[0], SQ[2]))
    e("v_lshlrev_b32 v101, 16, v100"); e("v_and_b32 v100, 0xffff0000, v100")
    e("v_add_f32 v101, s%d, v101" % sD); e("v_add_f32 v100, s%d, v100" % sD)
    e("v_cvt_pk_bf16_f32 v100, v101, v100")
    e("v_lshlrev_b32 v101, 16, v100"); e("v_and_b32 v100, 0xffff0000, v100")
    e("v_sqrt_f32 v101, v101"); e("v_sqrt_f32 v100, v100"); e("s_nop 0")
    e("v_cvt_pk_bf16_f32 v100, v101, v100")
    e("v_lshlrev_b32 v101, 16, v100"); e("v_and_b32 v100, 0xffff0000, v100")
    e("v_rcp_f32 v101, v101"); e("v_rcp_f32 v100, v100"); e("s_nop 0")
    e("ds_write_b32 v70, v101 offset:1024")
    e("ds_write_b32 v70, v100 offset:%d" % (1024 + 8 * XROW))
    g.emit(("wvm", "m0"))
    def areads(n, slot, tag, regs, astep):
        base = AF + 16 * (n % 2)
        return [("lg", "ds_read_b64_tr_b16 %s, v%d offset:%d" % (vr(base + 4 * mt + 2 * a, 2), regs[mt % 2], slot + a * astep + (mt // 2) * 256), tag)
                for mt in range(4) for a in range(2)]
    def breads(dst, addr, off, tag):
        return [("lg", "ds_read_b128 %s, v%d offset:%d" % (dst(q4), addr[q4 // 2], off + (q4 % 2) * RS), tag) for q4 in range(4)]
    def acc16(accb, mt, q4): return vr(accb + 8 * (4 * (mt // 2) + q4) + 4 * (mt % 2))
    def macro_mf(n, accb, bsrc, first):
        base = AF + 16 * (n % 2)
        return [mfma16(acc16(accb, mt, q4), vr(base + 4 * mt), bsrc(q4), "0" if first else acc16(accb, mt, q4)) for mt in range(4) for q4 in range(4)]
    def kdma(m0, tag):
        it = []
        for b in range(4):
            it += [m0(b), ("vm", "buffer_load_dwordx4 v%d, %s, s%d offen offset:%d lds" % (vKD, sr(SK), sOK, b * 1024), tag)]
        return it + ["s_add_u32 s%d, s%d, 0x4000" % (sOK, sOK), "s_and_b32 s%d, s%d, 0x1ffff" % (sOK, sOK)]
    def vdma(m0, tag):
        return [m0] + [("vm", "buffer_load_dwordx4 v%d, %s, s%d offen offset:%d lds" % (vVD[b % 2], sr(SV), sOV, b * 1024), tag) for b in range(4)] + \
               ["s_add_u32 s%d, s%d, 0x4000" % (sOV, sOV), "s_and_b32 s%d, s%d, 0x1ffff" % (sOV, sOV)]
    def kdma_s(slot, tag): return kdma(lambda b: "s_add_u32 m0, s%d, %d" % (sREG, slot + 64 * b), tag)
    def vdma_s(slot, tag): return vdma("s_add_u32 m0, s%d, %d" % (sREG, slot), tag)
    def bupd(regs, step=256): return ["s_add_u32 s%d, s%d, %d" % (sBO, sBO, step), "s_and_b32 s%d, s%d, 0x3ff" % (sBO, sBO)] + ["v_add_u32 v%d, s%d, v%d" % (regs[k], sBO, vB[k]) for k in range(2)]
    DG = [3, 7, 11, 14]
    def res_dma(sc, g0, sign):
        for k in DG: sc.reserve(g0 + k, 8 * sign)
    def place_dma(sc, dm, g0):
        res_dma(sc, g0, -1)
        k = 0
        for it in dm:
            if isinstance(it, tuple): sc.put("dma", it, g0 + DG[k], g0 + DG[k], force=True); k += 1
            elif k < 4:
                sc.reserve(g0 + DG[k], 8); sc.put("dma", it, max(g0 - 1, 0), g0 + DG[k] - 1); sc.reserve(g0 + DG[k], -8)
            else: sc.put("dma", it, g0, min(g0 + GP + 1, sc.n - 1))
    def place_reads(sc, rd, b, g0):
        if b:
            sc.maxlg = 2
            sc.spread("rd", rd[:2] + b[:2] + rd[2:4] + b[2:], g0, g0 + 11, asap=True)
            sc.maxlg = 1
            sc.spread("rd", rd[4:], g0, g0 + 11, asap=True)
        else: sc.spread("rd", rd, g0, g0 + 11, asap=True)
    def swaps(b): return ["v_permlane16_swap_b32 v%d, v%d" % (b + k, b + 2 + k) for k in range(2)]
    ardA = lambda n: areads(n, aslot(n), "r%d" % n, vTA, 512)

    g.emit(ardA(0))
    e("s_waitcnt lgkmcnt(8)")
    stamp(True)
    e("s_barrier")
    stamp()
    aB = lambda n: (lambda q4: ar(16 * (n % 16) + 4 * q4))
    g.emit(breads(aB(0), vBR, 0, "r0"))
    for q4 in range(4): g.emit(("lg", "ds_read_b32 v%d, v%d offset:%d" % (vRS[q4], 81 if q4 < 2 else 89, 1024 + (q4 % 2) * RS), "rs"))
    if RG == 1: g.emit(bupd(vBR, 64))
    B2 = opts.get("b2", 1)
    if B2: g.emit(breads(aB(1), vBR, 64 * (1 % RG), "r1"))
    g.emit(("wboth", "m1", "r0"))
    mf = []
    for n in range(48): mf += macro_mf(n, [128, 0, 64][n // 16], aB(n), n % 16 == 0)
    sc = Sched(g, mf)
    for n in range(47): res_dma(sc, GP * n, 1)
    for n in range(47):
        g0 = GP * n
        wv = ["m%d" % (n + 2)] if n + 2 < 48 else None
        sc.put("w", ("wboth", wv, "r%d" % (n + 1)) if wv else ("wlg", "r%d" % (n + 1)), g0 + GP - 1, g0 + GP - 1, force=True)
        if B2:
            place_reads(sc, ardA(n + 1), None, g0)
            if n + 2 < 16:
                if (n + 2) % RG == 0: sc.spread("rb", bupd(vBR, 64 * RG), g0 + 4, g0 + 8, asap=True)
                sc.spread("rb", breads(aB(n + 2), vBR, 64 * ((n + 2) % RG), "r%d" % (n + 2)), g0 + 9, g0 + GP - 1, asap=True)
            continue
        b = breads(aB(n + 1), vBR, 64 * ((n + 1) % RG), "r%d" % (n + 1)) if n + 1 < 16 else None
        place_reads(sc, ardA(n + 1), b, g0)
        if (n + 2) % RG == 0 and n + 2 < 16: sc.spread("rd", bupd(vBR, 64 * RG), g0 + 6, g0 + GP - 1, asap=True)
    for n in range(47):
        place_dma(sc, adma(n + 5) if n + 5 < 48 else [kdma_s(K0S, "k0"), kdma_s(KA, "k1"), vdma_s(VA, "v0"), kdma_s(KB, "k2")][n - 43], GP * n)
    XC = opts.get("xcap", 0)
    if XC:
        for i in range(GP * 16, GP * 48, XC): sc.caps[i] += 4
    if opts.get("lcap", 0):
        for i in range(0, GP * 16, 2): sc.caps[i] += 4
    sc.spread("l", late[:5], 0, GP * 10, asap=True)
    sc.spread("l", late[5:], 0, GP * 15, asap=True)
    sc.spread("ls", lates, 0, GP * 10, asap=True)
    BIAS, BU = 112, 90
    if not EB: sc.spread("x", [("vm", "buffer_load_dwordx2 %s, v82, %s, s%d offen offset:%d" % (vr(BIAS + 2 * mt, 2), sr(SB1), sOH, 32 * mt), "b1") for mt in range(4)], GP * 11, GP * 13, slack=3)
    hep = [("wvm", "b1")]
    for k in range(8):
        hep += ["v_lshlrev_b32 v%d, 16, v%d" % (BU + 2 * k, BIAS + k), "v_and_b32 v%d, 0xffff0000, v%d" % (BU + 2 * k + 1, BIAS + k)]
    sc.spread("x", hep, GP * 15 + 8, GP * 17, asap=True)
    def hdst(t, q4): return 160 + 8 * q4 + (4 if t == 0 else 0)
    hep = []
    for t in (1, 0):
        for q4 in range(4):
            b = 128 + 8 * (4 * t + q4)
            hep += ["v_fma_f32 v%d, v%d, v%d, v%d" % (b + k, b + k, vRS[q4], BU + 8 * t + k) for k in range(8)]
    sc.spread("x", hep, GP * 16 + 8, GP * 32 - 4, asap=True)
    hep = ["s_mov_b32 s%d, 0x%x" % (sD, f2u(math.log2(math.e) / math.sqrt(128.0)))] + ["v_mul_f32 v%d, s%d, v%d" % (vRS[k], sD, vRS[k]) for k in range(4)]
    for t in (1, 0):
        for q4 in range(4):
            b = 128 + 8 * (4 * t + q4)
            hep += ["v_max_f32 v%d, 0, v%d" % (b + k, b + k) for k in range(8)]
            hep += ["v_mul_f32 v%d, v%d, v%d" % (b + k, b + k, b + k) for k in range(8)]
            hep += ["v_cvt_pk_bf16_f32 v%d, v%d, v%d" % (hdst(t, q4) + k, b + 2 * k, b + 2 * k + 1) for k in range(4)]
    sc.spread("x", hep, GP * 16, GP * 48 - 1, asap=True)
    def qpack(half):
        it = []; pend = []
        for gi in range(8 * half, 8 * half + 8):
            b = 8 * gi; d = 4 * gi
            it += ["v_mul_f32 v%d, v%d, v%d" % (b + k, b + k, vRS[gi % 4]) for k in range(8)] + pend
            it += ["v_cvt_pk_bf16_f32 v%d, v%d, v%d" % (d + k, b + 2 * k, b + 2 * k + 1) for k in range(4)]
            pend = swaps(d)
        return it + ["s_nop 1"] + pend
    vZ = 240; vFO = 241; vFL = 242; vP16 = 244
    if not EB: sc.spread("y", ["v_mov_b32 v%d, 0" % vTAG, ("vm", "global_load_dwordx2 %s, v%d, s[%d:%d] sc1" % (vr(vTAG, 2), vTAG, sDBG, sDBG + 1), "tag")], GP * 12, GP * 13, slack=3)
    su = ["s_mul_i32 s%d, s%d, %d" % (sOH, sR, 224 * 1024),
          "s_lshl_b32 s%d, s%d, 13" % (sA, sU), "s_add_u32 s%d, s%d, s%d" % (sOH, sOH, sA), "s_add_u32 s%d, s%d, s%d" % (sOH, sOH, sINV),
          "s_add_u32 s%d, s%d, 4096" % (sOH2, sOH),
          "s_add_u32 s%d, s%d, %d" % (sKD, sREG, KA), "s_add_u32 s%d, s%d, %d" % (sVD, sREG, VB),
          "s_lshl_b32 s%d, s%d, 1" % (sA, sREG), "s_add_u32 s%d, s%d, %d" % (sKSUM, sA, KA + KB), "s_add_u32 s%d, s%d, %d" % (sVSUM, sA, VA + VB),
          "s_mov_b32 s%d, 0x%x" % (sKR, (KA - KB) & 0xffffffff), "s_mov_b32 s%d, 0x%x" % (sVR, (VB - VA) & 0xffffffff),
          "s_mov_b32 s%d, 0" % sCNT,
          "s_mul_i32 s%d, s%d, %d" % (sOW2, sW, 448 * 1024), "s_lshl_b32 s%d, s%d, 7" % (sA, sJ), "s_add_u32 s%d, s%d, s%d" % (sOW2, sOW2, sA),
          "s_lshl_b32 s%d, s%d, 8" % (sOS, sR), "s_lshl_b32 s%d, s%d, 5" % (sA, sG), "s_add_u32 s%d, s%d, s%d" % (sOS, sOS, sA),
          "s_lshl_b32 s%d, s%d, 3" % (sA, sW), "s_add_u32 s%d, s%d, s%d" % (sOS, sOS, sA), "s_add_u32 s%d, s%d, 0x%x" % (sOS, sOS, HF_OFF),
          "s_lshl_b32 s%d, s%d, 8" % (sPOLL, sRC), "s_lshl_b32 s%d, s%d, 6" % (sA, sW), "s_add_u32 s%d, s%d, s%d" % (sPOLL, sPOLL, sA),
          "s_add_u32 s%d, s%d, 0x%x" % (sPOLL, sPOLL, HF_OFF),
          "s_lshl_b32 s%d, s2, 2" % sC, "s_add_u32 s%d, s%d, s%d" % (sC, sC, sW), "s_lshl_b32 s%d, s%d, 11" % (sC, sC),
          "s_mul_i32 s%d, s%d, %d" % (sF, sRC, 224 * 1024), "s_mul_i32 s%d, s%d, %d" % (sA, sW, 56 * 1024), "s_add_u32 s%d, s%d, s%d" % (sF, sF, sA),
          ] + ["v_mov_b32 v%d, 0x3f803f80" % (ONES + k) for k in range(3)]
    vB2 = ONES + 3
    sc.spread("y", ["s_lshl_b32 s%d, s%d, 7" % (sB2O, sJ), "s_lshl_b32 s%d, s%d, 20" % (sA, sW), "s_add_u32 s%d, s%d, s%d" % (sA, sA, sB2O), "v_lshrrev_b32 v%d, 3, v%d" % (vB2, vLANE16),
                    ("vm", "buffer_load_ushort v%d, v%d, %s, s%d offen" % (vB2, vB2, sr(SB2), sA), "b2")], GP * 11, GP * 12, slack=4)
    sHL = sF
    sc.spread("x", qpack(0), GP * 32 + 8, GP * 48 - 1, asap=True)
    sc.spread("y", su, GP * 24, GP * 48 - 1, asap=True)
    sc.spread("rd", ["v_add_u32 v%d, %d, v%d" % (vVR[0][k], (-2 * RS) & 0xffffffff, vVR[1][k]) for k in range(2)], GP * 47, GP * 48 - 1, asap=True)
    ov = sc.emit({GP * 16 - 1: stamp, GP * 32 - 1: stamp})
    if opts.get("v"): print("stream A overflow", ov, "x end", sc.pos["x"][0] / GP, "y end", sc.pos["y"][0] / GP, "l end", sc.pos["l"][0] / GP, sc.load[GP * 2:GP * 5], "ovf per pass", [sum(max(0, x - 8) for x in sc.load[GP * 16 * k:GP * 16 * (k + 1)]) for k in range(3)])
    stamp()
    KF, VF = 128, 160
    FA, FB = 232, [248, 252, 176, 180]
    def kreads(u, slot, dst, tag):
        return [("lg", "ds_read_b128 %s, v%d offset:%d" % (ar(dst + 4 * s), vKR[u], slot + (s % 2) * RS + (s // 2) * 64), tag) for s in range(8)]
    def vreads(u, dst, tag):
        return [("lg", "ds_read_b64_tr_b16 %s, v%d offset:%d" % (ar(dst + 4 * f + 2 * a, 2), vVR[u][f % 2], a * RS + (f // 2) * 256), tag) for f in range(8) for a in range(2)]
    def S(p): return 64 if p else 128
    def P(p, q4): return 96 + 16 * p + 4 * q4
    def NM(q4): return 160 + 4 * q4
    def OA(f, q4): return 8 * (4 * (f // 2) + q4) + 4 * (f % 2)
    def qk(p, kf, first_c):
        mf = []
        for s in range(8):
            for q4 in range(4):
                d = vr(S(p) + 8 * q4 + 4 * (s % 2))
                mf.append(mfma16(d, ar(kf + 4 * s), vr(4 * (4 * (s // 2) + q4)), d if s >= 2 else first_c(q4)))
        return mf
    def pv(p, vf, zero=False):
        return [mfma16(vr(LAC[q4]), vr(ONES), vr(P(p, q4)), "0" if zero else vr(LAC[q4])) for q4 in range(4)] + \
               [mfma16(ar(OA(f, q4)), ar(vf + 4 * f), vr(P(p, q4)), "0" if zero else ar(OA(f, q4))) for f in range(8) for q4 in range(4)]
    def fmac(fa, fb):
        return [mfma16(ar(192 + 16 * q4 + 4 * mt), vr(fa + 4 * mt), vr(fb[q4]), ar(192 + 16 * q4 + 4 * mt)) for mt in range(4) for q4 in range(4)]
    def freads(m, fa, tag):
        return [("lg", "ds_read_b64_tr_b16 %s, v%d offset:%d" % (vr(fa + 4 * mt + 2 * a, 2), vTW[mt % 2], 4096 * m + a * 2048 + (mt // 2) * 256), tag) for mt in range(4) for a in range(2)]
    def w2dma(m, tag):
        it = []
        for hh in range(2):
            it += ["s_add_u32 m0, s%d, %d" % (sREG, 4096 * m + 2048 * hh)]
            it += [("vm", "buffer_load_dwordx4 v%d, %s, s%d offen offset:%d lds" % (vWO[b], sr(SW2), sOW2, b * 1024), tag) for b in range(2)]
            it += ["s_add_u32 s%d, s%d, 0x4000" % (sOW2, sOW2)]
        return it
    def hload(fb, tag):
        return [("vm", "buffer_load_dwordx4 %s, v%d, %s, s%d offen offset:%d sc1" % (vr(fb[q4]), vLANE16, sr(SWS), sHL, 1024 * q4), tag) for q4 in range(4)] + \
               ["s_add_u32 s%d, s%d, 4096" % (sHL, sHL)]
    rare_sites = {}
    def smx(p, name=None, subs=None):
        T = lambda i: vT + (i % NT)
        exps = [([subs[i]] if subs else []) + ["v_exp_f32 v%d, v%d" % (T(i), S(p) + i)] for i in range(32)]
        exps = [x if len(x) > 1 else x[0] for x in exps]
        sm_ = []
        for j in range(16):
            sm_.append(("v_cvt_pk_bf16_f32 v%d, v%d, v%d" % (P(p, 0) + j, T(2 * j), T(2 * j + 1)), 2 * j + 2, 2 * j + 2))
            if name:
                if j == 2: sm_.append(("v_or3_b32 v%d, v%d, v%d, v%d" % (vOR, P(p, 0), P(p, 0) + 1, P(p, 0) + 2), 0, 0))
                elif j > 2 and j % 2 == 0: sm_.append(("v_or3_b32 v%d, v%d, v%d, v%d" % (vOR, vOR, P(p, 0) + j - 1, P(p, 0) + j), 0, 0))
        if name:
            rare_sites[name] = p
            sm_.append(("v_or_b32 v%d, v%d, v%d" % (vOR, vOR, P(p, 0) + 15), 0, 0))
            sm_.append(("v_and_b32 v%d, s%d, v%d" % (vOR, sBIG, vOR), 0, 0))
            sm_.append(("v_cmp_ne_u32 vcc, 0, v%d" % vOR, 0, 0))
            sm_.append((["s_cbranch_vccnz L_rare%s" % name, "L_back%s:" % name], 0, 0))
        return exps, sm_
    def sm_flat(p):
        ex, sm_ = smx(p)
        x = ex[:2]
        for j in range(16): x += ex[2 * j + 2:2 * j + 4] + (["s_nop 0"] if j == 15 else []) + [sm_[j][0]]
        return x
    def allreduce(op, regs, tmps, fill):
        it = []
        for sw in ("v_permlane16_swap_b32", "v_permlane32_swap_b32"):
            it += ["v_mov_b32 v%d, v%d" % (t, r) for r, t in zip(regs, tmps)] + fill()
            it += ["%s v%d, v%d" % (sw, t, r) for r, t in zip(regs, tmps)]
            it += ["%s v%d, v%d, v%d" % (op, r, r, t) for r, t in zip(regs, tmps)]
        return it
    def rowmax(p, regs):
        it = []
        for q4 in range(4):
            s0 = S(p) + 8 * q4; t = regs[q4]
            it += ["v_max3_f32 v%d, v%d, v%d, v%d" % (t, s0, s0 + 1, s0 + 2), "v_max3_f32 v%d, v%d, v%d, v%d" % (t, t, s0 + 3, s0 + 4),
                   "v_max3_f32 v%d, v%d, v%d, v%d" % (t, t, s0 + 5, s0 + 6),
                   "v_max_f32 v%d, v%d, v%d" % (t, t, s0 + 7)]
        return it
    poll = "buffer_load_dwordx2 %s, v%d, %s, s%d offen sc1" % (vr(vFL, 2), vFO, sr(SWS), sPOLL)
    cmpf = "v_cmp_ne_u64 vcc, %s, %s" % (vr(vFL, 2), vr(vTAG, 2))
    g.emit(("wvm", ["k0", "k1"]))
    e("s_barrier")
    stamp(True)
    g.emit(kreads(1, K0S, KF, "kf0"))
    g.emit(kreads(0, KA, VF, "kf1"))
    qp = qpack(1)
    g.emit(qp[:30])
    g.emit(("wlg", "kf0"))
    sc = Sched(g, qk(0, KF, lambda q4: "0"))
    hst = [("vm", "buffer_store_dwordx4 %s, v%d, %s, s%d offen offset:%d sc1" % (vr(hdst(t, q4)), vLANE16, sr(SWS), [sOH, sOH2][t], q4 * 1024), "hst")
           for q4 in range(4) for t in range(2)]
    sc.spread("h", hst, 0, 25)
    h1 = len(qp) // 2 + 9
    sc.pour("q", qp[30:h1] + ["s_nop 0"], 0, 15)
    sc.pour("q", qp[h1:] + ["s_nop 1"], 8, 23)
    sc.spread("h", ["v_and_b32 v%d, 0x780, v%d" % (vP16, vL128), ("vm", "buffer_load_dword v%d, v%d, %s, s%d offen" % (vP16, vP16, sr(SW2), sC), "pf")], 26, 29)
    ZOFF = 40704; vZA = 245; vZB = 246; XL = 37888
    sc.spread("z", ["v_mov_b32 v%d, 0" % vZ, "v_lshrrev_b32 v%d, 2, v%d" % (vZA, vLANE16), "v_add_u32 v%d, s%d, v%d" % (vZA, sREG, vZA),
                    "v_lshrrev_b32 v%d, 4, v%d" % (vZB, vLANE16), "v_and_b32 v%d, 0x30, v%d" % (vZB, vZB), "v_add_u32 v%d, s%d, v%d" % (vZB, sREG, vZB),
                    "v_lshlrev_b32 v%d, 16, v%d" % (vB2, vB2),
                    ("lg", "ds_write_b32 v%d, v%d offset:%d" % (vZA, vB2, ZOFF), "zw"),
                    "v_and_b32 v%d, 0x70, v%d" % (vFO, vLANE16), "v_lshrrev_b32 v%d, 1, v%d" % (vFO, vFO), "s_mov_b32 s%d, 0x%x" % (sD, f2u(SHIFT))], 22, 31, asap=True)
    sc.emit()
    stamp(True)
    MX = [232, 233, 234, 235]; MT = [236, 237, 238, 239]
    zr = [("lg", "ds_read_b128 %s, v%d offset:%d" % (ar(192 + 4 * i), vZB, ZOFF + 64 * (i % 4)), "zr") for i in range(16)]
    g.emit(zr[:6] + ["v_mov_b32 v%d, 0x3f803f80" % vB2, "v_and_b32 v%d, 0x%x, v%d" % (vL128, 1024 * GG - 128, vL128)])
    g.emit(rowmax(0, MX))
    g.emit(allreduce("v_max_f32", MX, MT, lambda: []))
    for q4 in range(4): e("v_add_f32 v%d, s%d, v%d" % (MX[q4], sD, MX[q4]))
    for q4 in range(4):
        for k in range(4): e("v_sub_f32 v%d, 0, v%d" % (NM(q4) + k, MX[q4]))
    nmc = lambda q4: vr(NM(q4))
    subs = ["v_sub_f32 v%d, v%d, v%d" % (S(0) + k, S(0) + k, MX[k // 8]) for k in range(32)]
    g.emit(("wlg", "kf1"))
    stamp(True)
    sc = Sched(g, qk(1, VF, nmc))
    sc.spread("k", kreads(1, KA, KF, "kf"), 0, 15)
    sc.spread("k", ["v_add_u32 v%d, %d, v%d" % (vKR[u], KB, vKR[u]) for u in range(2)], 16, 20)
    sc.put("b", [("wboth", ["k2", "v0"], "kf"), "s_barrier"], 27, 27, force=True)
    ex, sm_ = smx(0, None, subs)
    sc.softmax("s", ex, sm_, NT, 0, 31)
    sc.emit()
    stamp()
    fl = ["v_cmp_eq_u32 vcc, 0, v%d" % vTAG, "s_cbranch_vccnz L_tagwait", "L_tagok:", ("wvm", "hst"), "s_mov_b64 exec, 1",
          ("vm", "buffer_store_dwordx2 %s, v%d, %s, s%d offen sc1" % (vr(vTAG, 2), vZ, sr(SWS), sOS), "hflag"), "s_mov_b64 exec, -1"]

    NP = opts.get("np", 1); NL = 7 - NP; NE = 2 * (NP - 1)
    def attn_iter(withF, name, first=False, last=False):
        f = 16 if withF else 0
        F = [0, 68 + f]; QK = [f, 68 + 2 * f]; PVs = [32 + f, 100 + 2 * f]
        n = 136 + 2 * f
        fs = fmac(FA, FB) if withF else []
        sc = Sched(g, fs + qk(0, KF, nmc) + pv(0, VF, zero=first) + fs + qk(1, KF, nmc) + pv(1, VF))
        sc.maxlg = opts.get("mlg", 2)
        BG = n - 9
        v0 = vreads(0, VF, "vf0")
        kd = kdma(lambda b: "s_add_u32 m0, s%d, %d" % (sKD, 64 * b), "kl") + ["s_sub_u32 s%d, s%d, s%d" % (sKD, sKSUM, sKD)]
        vd = vdma("s_mov_b32 m0, s%d" % sVD, "vl") + ["s_sub_u32 s%d, s%d, s%d" % (sVD, sVSUM, sVD)]
        def pairs(sid, items, lo, hi):
            m = len(items) // 2
            for k in range(m):
                t = lo + (k * (hi + 1 - lo)) // m
                while sc.load[t] > 0 and t < hi: t += 1
                t = sc.put(sid, items[2 * k], t, hi + 2); sc.put(sid, items[2 * k + 1], t, hi + 2)
        sc.put("b", ("wboth", ["kl", "vl"], "kf1"), BG, BG, force=True); sc.put("b", "s_barrier", BG, BG, force=True); sc.reserve(BG, 4)
        sc.put("w", ("wboth", "p_w1", "vf0") if withF else ("wlg", "vf0"), PVs[0] + 3, PVs[0] + 3, force=True)
        sc.put("w", ("wboth", "h1", ["fa1", "kf0"]) if withF else ("wlg", "kf0"), F[1] - 1, F[1] - 1, force=True)
        sc.put("w", ("wboth", "w0", "vf1") if (withF or last) else ("wlg", "vf1"), PVs[1] + 3, PVs[1] + 3, force=True)
        if withF:
            sc.put("w", ("wboth", ["h0"], "fa0"), n - 2, n - 2, force=True)
            sc.put("w", "s_cmp_lt_u32 s%d, %d" % (sCNT, NL), n - 1, n - 1, force=True)
            sc.put("w", "s_cbranch_scc1 L_attn", n - 1, n - 1, force=True)
            sc.reserve(n - 1, 4)
            sc.spread("h", hload(FB, "h1"), 16, 23)
            sc.spread("d", w2dma(0, "w0") + kd + vd, 24, F[1] - 4)
            sc.spread("h", hload(FB, "h0"), F[1] + 16, F[1] + 23)
            sc.spread("d", w2dma(1, "w1") + [("vm", "buffer_load_dword v%d, v%d, %s, s%d offen" % (vDUM, vL128, sr(SWO), sOPF), "pf2"), "s_add_u32 s%d, s%d, %d" % (sOPF, sOPF, 1024 * GG),
                            "s_add_u32 s%d, s%d, 1" % (sCNT, sCNT), ["s_cmp_eq_u32 s%d, %d" % (sCNT, NL - 1), "s_cselect_b32 s%d, 0, s%d" % (SK + 2, SK + 2)]], F[1] + 24, F[1] + 54)
            sc.maxlg = 1
            sc.spread("fa", freads(1, FA, "fa1"), PVs[0] + 4, F[1] - 10)
        else:
            if first: sc.put("h", fl, 0, 0, force=True)
            pf = [] if first else [("vm", "buffer_load_dword v%d, v%d, %s, s%d offen" % (vDUM, vL128, sr(SWO), sOPF), "pf2"), "s_add_u32 s%d, s%d, %d" % (sOPF, sOPF, 1024 * GG)]
            if last:
                sc.put("w", ("wboth", ["h0"], "fa0"), n - 1, n - 1, force=True)
                HPG = opts.get("hpg", 70 if first else 2)
                HPD = 30 if first else 60
                sc.put("h", ("vm", poll, "hpoll"), HPG, HPG + 4)
                xd = ["v_bfe_u32 v%d, v%d, 8, 1" % (vZA, vLANE16), "v_lshrrev_b32 v247, 9, v%d" % vLANE16, "v_lshl_add_u32 v%d, v%d, 1, v247" % (vZA, vZA),
                      "v_lshlrev_b32 v%d, 4, v%d" % (vZA, vZA), "v_and_b32 v247, 0xf0, v%d" % vLANE16, "v_lshl_add_u32 v247, v247, 6, v%d" % vZA,
                      "s_lshl_b32 s%d, s%d, 14" % (sA, sW), "s_lshl_b32 s%d, s%d, 16" % (sXO, sRC), "s_add_u32 s%d, s%d, s%d" % (sXO, sXO, sA), "s_add_u32 s%d, s%d, s%d" % (sXO, sXO, sB2O)]
                sc.spread("xd", xd, 1, 16)
                xd = []
                for t in range(2): xd += ["s_add_u32 m0, s%d, %d" % (sREG, XL + 1024 * t - 64 * t), ("vm", "buffer_load_dwordx4 v247, %s, s%d offen offset:%d lds" % (sr(SX), sXO, 64 * t), "xf")]
                sc.spread("d", kd + xd + w2dma(0, "w0") + vd, 4, 60)
                sc.put("h", [("wvm", "hpoll"), cmpf, "s_cbranch_vccnz L_hwait", "L_hok:"], HPG + HPD, HPG + HPD, force=True)
                sc.spread("h", hload(FB, "h0"), max(HPG + HPD + 1, 66), n - 1, asap=True)
                sc.spread("d", w2dma(1, "w1") + pf, sc.pos["h"][0], n - 1, asap=True)
                assert HPG + HPD < PVs[1] + 4
            else: sc.spread("d", kd + vd + pf, 4, 64)
        sc.maxlg = 2
        pairs("v", v0 if first else v0[8:], 0, PVs[0] - 6)
        pairs("v", vreads(1, VF, "vf1"), PVs[0] + 36, PVs[1] - 6)
        sc.maxlg = 1
        sc.spread("k", kreads(0, 0, KF, "kf0"), QK[0] + 32, F[1] - 10)
        sc.spread("k", kreads(1, 0, KF, "kf1"), QK[1] + 32, BG - 9)
        if withF or last: sc.spread("fa", freads(0, FA, "fa0"), PVs[1] + 4, n - 11)
        sc.spread("v", ["v_add_u32 v%d, s%d, v%d" % (vVR[u][k], sVR, vVR[u][k]) for u in range(2) for k in range(2)] + ["s_sub_u32 s%d, 0, s%d" % (sVR, sVR)], PVs[1], BG - 1)
        sc.spread("k", ["v_add_u32 v%d, s%d, v%d" % (vKR[u], sKR, vKR[u]) for u in range(2)] + ["s_sub_u32 s%d, 0, s%d" % (sKR, sKR)], BG - 8, n - 3)
        sc.maxlg = 2
        sc.spread("v", v0[:8], BG + 1, n - 2)
        if first: pairs("z", zr[6:], 30, 60)
        for half in range(2):
            p = (1 + half) % 2
            ex, sm_ = smx(p, "%s%d" % (name, half))
            lo, hi = (0, QK[1] - 1 - opts.get("smb", 8 if withF else 0)) if half == 0 else (F[1], n - 2)
            gb = sc.softmax("s", ex, sm_, NT, lo, hi)
            assert QK[half] + 31 <= gb < (QK[1] if half == 0 else n), (gb, QK)
        return sc
    g.lg = []
    for i in range(NP):
        sc = attn_iter(False, "p%d" % i, first=(i == 0), last=(i == NP - 1))
        ov = sc.emit()
        if opts.get("v"): print("attn0 over", ov)
    stamp()
    e(".p2align 3")
    g.lab("L_attn")
    def prev(l): return ["p_" + x for x in l]
    save = g.L
    outs = []
    seed_vm, seed_lg = prev(g.vm), list(g.lg)
    for it in range(3):
        g.L = []; g.vm = list(seed_vm); g.lg = list(seed_lg)
        n0, l0 = len(g.vm), len(g.lg)
        sc = attn_iter(True, "l")
        ov = sc.emit()
        outs.append(g.L)
        seed_vm, seed_lg = prev(g.vm[n0:]), list(g.lg[l0:])
    if opts.get("v"): print("attn loads", sc.load, "over", ov, "sum", sum(sc.load))
    merged = []
    for lines in zip(*outs):
        if len(set(lines)) == 1: merged.append(lines[0]); continue
        assert all("s_waitcnt" in x for x in lines), lines
        parts = []
        for c in ("vmcnt", "lgkmcnt"):
            v = [re.search(c + r"\((\d+)\)", x) for x in lines]
            if v[0]: parts.append("%s(%d)" % (c, min(int(m.group(1)) for m in v)))
        if opts.get("v"): print("merge", lines)
        merged.append("    s_waitcnt " + " ".join(parts))
    g.L = save + merged
    g.vm = seed_vm; g.lg = seed_lg
    stamp()
    vRL = [48, 50, 52, 54]; vOW = [211, 212]; vBR2 = [200, 201]
    ACCA, ACCB, OP = 128, 64, 64
    FB2 = [16, 20, 24, 28]
    mf = fmac(FA, FB) + pv(0, VF) + fmac(0, FB2) + pv(1, KF)
    M0 = len(mf); P15 = M0 - 36
    def bB(n):
        s = n % 16
        return (lambda q4: vr(16 * (s - 12) + 4 * q4)) if s >= 12 else (lambda q4: ar(16 * s + 4 * q4))
    for n in range(32):
        mf += macro_mf(n, ACCA if n < 16 else ACCB, (lambda q4, n=n: vr(OP + 16 * n + 4 * q4)) if n < 4 else bB(n), n % 16 == 0)
    sc = Sched(g, mf)
    MG = lambda n: M0 + GP * n
    ardB = lambda n: areads(n, BSLOT[n % 5], "r%d" % n, vTW, 2048)
    v0 = vreads(0, VF, "v14b")
    sc.spread("h", hload(FB2, "h27"), 0, 9)
    sc.maxlg = 2
    sc.spread("v", v0[8:], 0, 11)
    sc.put("w", ("wboth", "p_w1", "v14b"), 19, 19, force=True)
    sc.spread("fr", freads(1, 0, "fa"), 20, 34)
    sc.put("w", ("wboth", "h27", "fa"), 51, 51, force=True)
    sc.spread("v", vreads(1, KF, "v15"), 30, 60)
    sc.maxlg = 1
    sc.put("w", [("wlg", "v15"), "s_barrier"], P15 + 3, P15 + 3, force=True)
    def bdma(n):
        pre = ["s_add_u32 m0, s%d, %d" % (sREG, BSLOT[n % 5])]
        if n == 0: pre += ["s_lshl_b32 s%d, s%d, 1" % (sJA, sW), "s_xor_b32 s%d, s%d, s%d" % (sJA, sJA, sG), "s_xor_b32 s%d, s%d, 1" % (sJA, sJA),
                           "s_lshl_b32 s%d, s%d, 10" % (sOM, sW), "s_add_u32 s%d, s%d, s%d" % (sOM, sOM, sJA), "s_lshl_b32 s%d, s%d, 7" % (sOM, sOM)]
        else:
            pre += ["s_add_u32 s%d, s%d, %d" % (sOM, sOM, 32 * 1024)]
            if n == 16: pre += ["s_xor_b32 s%d, s%d, 128" % (sOM, sOM)]
            if n % 4 == 0: pre += ["s_and_b32 s%d, s%d, 0x7ffff" % (sOM, sOM)]
        return pre + [("vm", "buffer_load_dwordx4 v%d, %s, s%d offen offset:%d lds" % (vWO[b], sr(SWO), sOM, b * 1024), "m%d" % n) for b in range(4)]
    sc.spread("dma", ["v_add_u32 v%d, %d, v%d" % (vWO[2 + k], 2 * (8192 - 1024), vWO[k]) for k in range(2)] + bdma(0) + bdma(1) + bdma(2) + bdma(3), opts.get("bd0", 24), P15 + 14, slack=3)
    sc.spread("dma", bdma(4), P15 + 17, M0 - 4, slack=2)
    sc.put("rd", ("wvm", "m0"), M0 - 16, M0 - 16, force=True)
    sc.spread("rd", ardB(0), M0 - 15, M0 - 6)
    sc.put("w", ("wboth", "m1", "r0"), M0 - 1, M0 - 1, force=True)
    ex, sm_ = smx(1, "t")
    sc.softmax("s", ex, sm_, NT, 0, P15 - 2)
    lt = ["s_lshl_b32 s%d, s%d, 8" % (sBO, sW)] + ["v_add_u32 v%d, s%d, v%d" % (vOW[k], sBO, vB[k]) for k in range(2)]
    sc.spread("s", lt, P15, P15 + 4, asap=True)
    lt = ["v_rcp_f32 v%d, v%d" % (vRL[q], LAC[q]) for q in range(4)]
    sc.spread("s", lt, P15 + 7, P15 + 14, asap=True)
    sc.spread("bu", bupd(vBR2), P15 + 8, P15 + 30, asap=True)
    TC = MG(3) + 4
    for n in range(27): res_dma(sc, MG(n), 1)
    for n in range(31):
        g0 = MG(n)
        wv = "m%d" % (n + 2) if n + 2 < 32 else None
        sc.put("w", ("wboth", wv, "r%d" % (n + 1)) if wv else ("wlg", "r%d" % (n + 1)), g0 + GP - 1, g0 + GP - 1, force=True)
        if B2:
            if n == 3:
                sc.maxlg = 2; sc.spread("rb", breads(bB(4), vBR2, 0, "r4"), TC + 1, TC + 3, asap=True); sc.maxlg = 1
            place_reads(sc, ardB(n + 1), None, g0)
            if 5 <= n + 2 < 20:
                if (n + 2) % 4 == 0: sc.spread("rb", bupd(vBR2), g0 + 4, g0 + 8, asap=True)
                sc.spread("rb", breads(bB(n + 2), vBR2, 64 * ((n + 2) % 4), "r%d" % (n + 2)), g0 + 9, g0 + GP - 1, asap=True)
            continue
        b = breads(bB(n + 1), vBR2, 64 * ((n + 1) % 4), "r%d" % (n + 1)) if 4 <= n + 1 < 20 else None
        if n + 1 == 4:
            sc.maxlg = 2; sc.spread("rb", b, TC + 1, TC + 3, asap=True); sc.maxlg = 1; b = None
        place_reads(sc, ardB(n + 1), b, g0)
        if (n + 2) % 4 == 0 and 4 < n + 2 < 20: sc.spread("rd", bupd(vBR2), g0 + 6, g0 + GP - 1, asap=True)
    for n in range(27): place_dma(sc, bdma(n + 5), MG(n))
    if opts.get("cpk", 1):
        pend = []
        for gi in range(17):
            dt, q4 = gi // 4, gi % 4
            if gi < 4: lo = max(P15 + 16 + 5 * gi, sc.pos["s"][0]); hi = P15 + 20 + 5 * gi
            else: lo = MG(dt - 1) + 4 * q4; hi = lo + 3
            t = 32 + 8 * (gi % 2)
            o = OP + 4 * gi
            rd_ = ["v_accvgpr_read_b32 v%d, a%d" % (t + k, 8 * gi + k) for k in range(8)] if gi < 16 else []
            for k, it in enumerate(pend[:4]):
                if q4 == 0: sc.put("s", it, lo + k // 2, lo + k // 2, force=True)
                else: sc.put("s", it, lo, hi)
            if pend: sc.put("ow", pend[4], sc.pos["s"][0] + 1, force=True)
            sc.caps[hi] = 1000
            for it in rd_: sc.put("s", it, lo, hi)
            if gi < 16:
                for k in range(4): sc.put("s", "v_pk_mul_f32 %s, %s, %s op_sel_hi:[1,0]" % (vr(t + 2 * k, 2), vr(t + 2 * k, 2), vr(vRL[q4], 2)), hi, hi, force=True)
            sc.caps[hi] = 8
            pend = ["v_cvt_pk_bf16_f32 v%d, v%d, v%d" % (o + k, t + 2 * k, t + 2 * k + 1) for k in range(4)]
            pend.append(("lg", "ds_write_b128 v%d, %s offset:%d" % (vOW[q4 // 2], vr(o), dt * 64 + (q4 % 2) * RS), "ow"))
    else:
      for dt in range(4):
        cv = []
        for q4 in range(4):
            a0 = 8 * (4 * dt + q4)
            t = 32 + 8 * (q4 % 2)
            o = OP + 16 * dt + 4 * q4
            cv = cv + ["v_accvgpr_read_b32 v%d, a%d" % (t + k, a0 + k) for k in range(8)]
            cv += ["v_mul_f32 v%d, v%d, v%d" % (t + k, t + k, vRL[q4]) for k in range(8)]
            cv += ["v_cvt_pk_bf16_f32 v%d, v%d, v%d" % (o + k, t + 2 * k, t + 2 * k + 1) for k in range(4)]
            cv.append(("lg", "ds_write_b128 v%d, %s offset:%d" % (vOW[q4 // 2], vr(o), dt * 64 + (q4 % 2) * RS), "ow"))
        sc.pour("s", cv, P15 + 14 if dt == 0 else MG(dt - 1), MG(dt) - 1, side="ow")
    sc.put("ow", [("wlg", "ow"), "s_barrier"], TC, TC, force=True)
    vXO, vBO, OLO2, OHI2, vZ2, vFL2, vFO2 = 196, 197, 198, 199, 210, 214, 213
    vRA = [218, 219, 220]
    XV, BV = 132, 140
    def scvt(ps):
        return ["v_cvt_pk_bf16_f32 v%d, v%d, v%d" % (b + k, b + 2 * k, b + 2 * k + 1) for b in range((ACCB if ps else ACCA), (ACCB if ps else ACCA) + 64, 8) for k in range(4)]
    def sst(ps):
        return [("vm", "buffer_store_dwordx4 %s, v%d, %s, s%d offen offset:%d sc1" % (vr((ACCB if ps else ACCA) + 8 * i), vLANE16, sr(SWS),
                 sOS if (i % 4) < 2 else sOS2, ((2 * (i % 4) + i // 4) % 4) * 1024), "s%d" % ps) for i in range(8)]
    fp = scvt(0)
    fp += ["v_bfe_u32 v%d, v%d, 8, 1" % (vBO, vLANE16), "v_lshrrev_b32 v%d, 9, v%d" % (vXO, vLANE16), "v_lshl_add_u32 v%d, v%d, 1, v%d" % (vBO, vBO, vXO),
           "v_lshlrev_b32 v%d, 4, v%d" % (vBO, vBO), "v_and_b32 v%d, 0xf0, v%d" % (vXO, vLANE16), "v_lshl_add_u32 v%d, v%d, 6, v%d" % (vXO, vXO, vBO),
           "v_mov_b32 v%d, 0x3f80" % OLO2, "v_mov_b32 v%d, 0x3f800000" % OHI2, "v_mov_b32 v%d, 0" % vZ2, "v_add_u32 v%d, s%d, v%d" % (vRA[0], sREG, vLANE16),
           "v_and_b32 v%d, 0x70, v%d" % (vFO2, vLANE16), "v_lshrrev_b32 v%d, 1, v%d" % (vFO2, vFO2)]
    fs_ = [
           "s_lshl_b32 s%d, s%d, 3" % (sPOLL, sRC), "s_add_u32 s%d, s%d, s%d" % (sPOLL, sPOLL, sJ), "s_lshl_b32 s%d, s%d, 16" % (sOPF, sPOLL),
           "s_lshl_b32 s%d, s%d, 7" % (sPOLL, sPOLL), "s_add_u32 s%d, s%d, 0x%x" % (sPOLL, sPOLL, F_OFF),
           "s_lshl_b32 s%d, s%d, 11" % (sA, sW), "s_add_u32 s%d, s%d, s%d" % (sOPF, sOPF, sA), "s_add_u32 s%d, s%d, 0x%x" % (sOPF, sOPF, S_OFF),
           "s_mov_b32 s%d, 0x%x" % (sD, f2u(-math.log2(math.e))),
           "s_lshl_b32 s%d, s%d, 3" % (sA, sR), "s_add_u32 s%d, s%d, s%d" % (sA, sA, sJA), "s_lshl_b32 s%d, s%d, 1" % (sE, sW), "s_add_u32 s%d, s%d, 1" % (sE, sE),
           "s_lshl_b32 s%d, s%d, 3" % (sB_, sA), "s_add_u32 s%d, s%d, s%d" % (sB_, sB_, sE), "s_lshl_b32 s%d, s%d, 13" % (sB_, sB_),
           "s_add_u32 s%d, s%d, 0x%x" % (sOS, sB_, S_OFF), "s_add_u32 s%d, s%d, 4096" % (sOS2, sOS),
           "s_lshl_b32 s%d, s%d, 4" % (sC, sA), "s_add_u32 s%d, s%d, s%d" % (sC, sC, sE), "s_lshl_b32 s%d, s%d, 3" % (sC, sC), "s_add_u32 s%d, s%d, 0x%x" % (sC, sC, F_OFF),
           "s_xor_b32 s%d, s%d, 0x88" % (sE, sC), "s_mov_b32 s%d, 0" % sPRE, "s_mov_b32 s%d, 0" % sKSUM,
           "s_lshl_b32 s%d, s%d, 11" % (sA, sW), "v_add_u32 v%d, s%d, v%d" % (221, sA, vLANE16),
           "s_lshl_b32 s%d, s%d, 12" % (sB_, sW), "s_add_u32 s%d, s%d, %d" % (sB_, sB_, BSLOT[2]), ["s_cmp_eq_u32 s%d, 3" % sW, "s_cselect_b32 s%d, %d, s%d" % (sB_, BSLOT[0], sB_)],
           "v_add_u32 v%d, s%d, v%d" % (vRA[1], sB_, vLANE16), "v_add_u32 v%d, %d, v%d" % (vRA[2], 2 * RS, vRA[1]), "s_mov_b32 s%d, 1" % sKD]
    sc.spread("fs", fs_, MG(5), MG(24), asap=True)
    sc.spread("st", fp[32:], MG(12), MG(16), asap=True)
    sc.spread("st", fp[:32], MG(16) + 8, MG(25), asap=True)
    def sflag(ps):
        return [("wvm", "s%d" % ps), "s_mov_b64 exec, 1",
                ("vm", "buffer_store_dwordx2 %s, v%d, %s, s%d offen sc1" % (vr(vTAG, 2), vZ2, sr(SWS), sE if ps else sC), "sflag%d" % ps), "s_mov_b64 exec, -1"]
    poll2 = "buffer_load_dwordx2 %s, v%d, %s, s%d offen sc1" % (vr(vFL2, 2), vFO2, sr(SWS), sPOLL)
    SV_, SS, FBU, XU = 128, 16, 64, 80
    sDONE, sNEW = sKD, sVD
    SEA = opts.get("sea", 0)
    SA0, SA1 = opts.get("sa0", 19 if SEA else 27), opts.get("sa1", 23 if SEA else 31)
    sc.spread("st", sst(0), MG(SA0), MG(SA1), slack=4)
    sc.spread("st", ["s_xor_b32 s%d, s%d, 0x12000" % (sOS, sOS), "s_xor_b32 s%d, s%d, 0x12000" % (sOS2, sOS2)], MG(SA1), sc.n - 1, asap=True)
    if opts.get("ob", 20): sc.put("fx", "s_barrier", MG(opts.get("ob", 20)) + 12, MG(opts.get("ob", 20)) + 12, force=True)
    FX = [BSLOT[2], BSLOT[3], BSLOT[4], BSLOT[0]]
    ov = sc.emit({M0 - 1: stamp, MG(4) - 1: stamp, MG(16) - 1: stamp})
    if opts.get("v"): print("tail/B loads", sc.load[:MG(5)], "overflow", ov)
    stamp()
    assert NE == 0 and (S_OFF & 0x12000) == 0 and (F_OFF & 0x88) == 0
    sARR = sKSUM
    cv1 = scvt(1); st1 = sst(1)
    e("s_cmp_eq_u32 s%d, 0" % sW)
    e("s_cbranch_scc1 L_own")
    for i in range(8):
        g.emit(cv1[4 * i:4 * i + 4]); g.emit(st1[i])
    g.lab("L_ownback")
    for T in range(4):
        for q4 in range(4): e("ds_write_b128 v%d, %s offset:%d" % (vRA[0], ar(192 + 16 * T + 4 * q4), FX[T] + q4 * 1024))
    XV = 96
    for t in range(2): e("ds_read_b128 %s, v%d offset:%d" % (vr(XV + 4 * t), vRA[0], XL + 1024 * t))
    g.emit(sflag(0))
    e("s_waitcnt lgkmcnt(0)")
    for b in (XV, XV + 4): g.emit(swaps(b))
    for k in range(8):
        e("v_lshlrev_b32 v%d, 16, v%d" % (XU + 2 * k, XV + k)); e("v_and_b32 v%d, 0xffff0000, v%d" % (XU + 1 + 2 * k, XV + k))
    stamp(True)
    g.emit(sflag(1))
    stamp(True)
    e(poll2); g.vm.append("spoll0")
    e("s_waitcnt lgkmcnt(0)")
    e("s_barrier")
    for rho in range(4):
        for q4 in range(4):
            e("ds_read_b128 %s, v%d offset:%d" % (vr(16 * rho + 4 * q4), vRA[1 + rho // 2], (rho % 2) * RS + q4 * 1024))
    for rho in range(1, 4):
        e("s_waitcnt lgkmcnt(%d)" % (12 - 4 * rho))
        for k in range(16): e("v_add_f32 v%d, v%d, v%d" % (FBU + k, FBU + k if rho > 1 else k, 16 * rho + k))
    for t in range(2): e("ds_read_b128 %s, v221 offset:%d" % (vr(SV_ + 4 * t), 1024 * t))
    def silu_b():
        for k in range(16): e("v_mul_f32 v%d, s%d, v%d" % (k, sD, FBU + k))
        for k in range(16): e("v_exp_f32 v%d, v%d" % (k, k))
        for k in range(16): e("v_add_f32 v%d, 1.0, v%d" % (k, k))
        for k in range(16): e("v_rcp_f32 v%d, v%d" % (k, k))
        for k in range(16): e("v_mul_f32 v%d, v%d, v%d" % (k, k, FBU + k))
    def ssum(gp):
        for k in range(8):
            src = SV_ + 8 * gp + k
            if gp == 0:
                e("v_lshlrev_b32 v%d, 16, v%d" % (SS + 2 * k, src)); e("v_and_b32 v%d, 0xffff0000, v%d" % (SS + 1 + 2 * k, src))
            else:
                e("v_dot2c_f32_bf16 v%d, v%d, v%d" % (SS + 2 * k, src, OLO2)); e("v_dot2c_f32_bf16 v%d, v%d, v%d" % (SS + 1 + 2 * k, src, OHI2))
    SIL = opts.get("sil", 1)
    if not SIL: silu_b()
    g.emit(("wvm", "spoll0"))
    e("s_branch L_pchk")
    g.lab("L_poll")
    e("s_sleep 1")
    e(poll2)
    e("s_add_u32 s%d, s%d, 1" % (sSPIN, sSPIN))
    e("s_cmp_gt_u32 s%d, 0x%x" % (sSPIN, 1 << 20))
    e("s_cbranch_scc1 L_pdone")
    e("s_call_b64 s[%d:%d], L_side" % (sRET, sRET + 1))
    e("s_waitcnt vmcnt(0)")
    e("s_mov_b32 s%d, s%d" % (sARR, sDONE))
    g.lab("L_pchk")
    e("v_cmp_eq_u64 vcc, %s, %s" % (vr(vFL2, 2), vr(vTAG, 2)))
    e("s_nop 1")
    e("s_andn2_b32 s%d, vcc_lo, s%d" % (sNEW, sDONE))
    e("s_and_b32 s%d, s%d, 0xff" % (sNEW, sNEW))
    e("s_cbranch_scc0 L_poll")
    e("s_or_b32 s%d, s%d, s%d" % (sDONE, sDONE, sNEW))
    for gp in (1, 3, 5, 7, 2, 4, 6):
        e("s_bitcmp1_b32 s%d, %d" % (sNEW, gp))
        e("s_cbranch_scc0 L_sk%d" % gp)
        e("s_add_u32 s%d, s%d, %d" % (sA, sOPF, 8192 * gp))
        for jj in range(2):
            e("buffer_load_dwordx4 %s, v%d, %s, s%d offen offset:%d sc1" % (vr(SV_ + 8 * gp + 4 * jj), vLANE16, sr(SWS), sA, jj * 1024))
        g.lab("L_sk%d" % gp)
    e("s_cmp_lg_u32 s%d, 0xff" % sDONE)
    e("s_cbranch_scc1 L_poll")
    g.lab("L_pdone")
    stamp(True)
    e("s_call_b64 s[%d:%d], L_side" % (sRET, sRET + 1))
    e("s_waitcnt vmcnt(0)")
    e("s_mov_b32 s%d, 0xff" % sARR)
    e("s_call_b64 s[%d:%d], L_side" % (sRET, sRET + 1))
    for gp in (2, 4, 6): ssum(gp)
    e("s_nop 0")
    stamp(True)
    for k in range(16): e("v_fma_f32 v%d, v%d, v%d, v%d" % (k, k, SS + k, XU + k))
    for k in range(8): e("v_cvt_pk_bf16_f32 v%d, v%d, v%d" % (48 + k, 2 * k, 2 * k + 1))
    g.emit(swaps(48)); g.emit(swaps(52))
    for t in range(2):
        e("buffer_store_dwordx4 %s, v%d, %s, s%d offen offset:%d" % (vr(48 + 4 * t), vXO, sr(SOUT), sXO, 64 * t))
    if stamps:
        e("s_waitcnt vmcnt(0)")
        stamp()
        e("s_memrealtime s[90:91]"); e("s_waitcnt lgkmcnt(0)"); e("v_writelane_b32 v%d, s90, 63" % vST)
        e("s_lshl_b32 s%d, s2, 2" % sA)
        e("s_add_u32 s%d, s%d, s%d" % (sA, sA, sW))
        e("s_lshl_b32 s%d, s%d, 8" % (sA, sA))
        e("s_add_u32 s%d, s%d, 0x%x" % (sA, sA, F_OFF + 0x20000))
        e("v_lshrrev_b32 v0, 2, v%d" % vLANE16)
        e("buffer_store_dword v%d, v0, %s, s%d offen" % (vST, sr(SWS), sA))
    g.lab("L_end")
    e("s_endpgm")
    g.lab("L_side")
    if SIL:
        e("s_bitcmp1_b32 s%d, 0" % sPRE)
        e("s_cbranch_scc1 L_side1")
        silu_b()
        e("s_or_b32 s%d, s%d, 1" % (sPRE, sPRE))
        g.lab("L_side1")
    e("s_and_b32 s%d, s%d, 0xaa" % (sA, sARR))
    e("s_and_b32 s%d, s%d, 2" % (sB_, sPRE))
    e("s_lshl_b32 s%d, s%d, 8" % (sB_, sB_))
    e("s_or_b32 s%d, s%d, s%d" % (sA, sA, sB_))
    e("s_cmp_lg_u32 s%d, 0xaa" % sA)
    e("s_cbranch_scc1 L_side2")
    e("s_waitcnt lgkmcnt(0)")
    for gp in (0, 1, 3, 5, 7): ssum(gp)
    e("s_or_b32 s%d, s%d, 2" % (sPRE, sPRE))
    g.lab("L_side2")
    e("s_setpc_b64 s[%d:%d]" % (sRET, sRET + 1))
    g.lab("L_own")
    for i in range(8):
        g.emit(cv1[4 * i:4 * i + 4])
        e("ds_write_b128 v%d, %s offset:%d" % (vLANE16, vr(ACCB + 8 * i), (2 * (i % 4) + i // 4) * 1024))
    e("s_waitcnt vmcnt(0) lgkmcnt(0)")
    e("s_branch L_ownback")
    g.lab("L_codeend")
    g.lab("L_mktag")
    e("s_memrealtime s[%d:%d]" % (sT0, sT0 + 1))
    e("s_waitcnt lgkmcnt(0)")
    e("s_or_b32 s%d, s%d, 1" % (sA, sT0))
    e("v_mov_b32 v120, s%d" % sA)
    e("v_mov_b32 v121, s%d" % (sT0 + 1))
    e("v_mov_b32 v122, 0")
    e("global_store_dwordx2 v122, v[120:121], s[%d:%d] sc1" % (sDBG, sDBG + 1))
    e("s_branch L_notag")
    def spin(lab, back, load, cmp):
        g.lab(lab)
        e("s_sleep 1")
        for x in load: e(x)
        e("s_add_u32 s%d, s%d, 1" % (sSPIN, sSPIN))
        e("s_cmp_gt_u32 s%d, 0x%x" % (sSPIN, 1 << 20))
        e("s_cbranch_scc1 %s" % back)
        e("s_waitcnt vmcnt(0)")
        e(cmp)
        e("s_cbranch_vccnz %s" % lab)
        e("s_branch %s" % back)
    spin("L_tagwait", "L_tagok", ["global_load_dwordx2 %s, v%d, s[%d:%d] sc1" % (vr(vTAG, 2), vZ, sDBG, sDBG + 1)], "v_cmp_eq_u32 vcc, 0, v%d" % vTAG)
    spin("L_hwait", "L_hok", [poll], cmpf)
    for n, p in rare_sites.items():
        g.lab("L_rare%s" % n)
        e("s_call_b64 s[%d:%d], L_resc%d" % (sRET, sRET + 1, p))
        e("s_branch L_back%s" % n)
    for p in range(2):
        g.lab("L_resc%d" % p)
        e("s_nop 7"); e("s_nop 3")
        D = [ONES + k for k in range(4)]; FCT = [vT + 2, vT + 3, vT + 4, vT + 5]
        g.emit(rowmax(p, D))
        g.emit(allreduce("v_max_f32", D, FCT, lambda: []))
        for q in range(4): e("v_add_f32 v%d, 0x%x, v%d" % (D[q], f2u(SHIFT), D[q]))
        for q in range(4): e("v_max_f32 v%d, 0, v%d" % (D[q], D[q]))
        for q in range(4): e("v_ceil_f32 v%d, v%d" % (D[q], D[q]))
        for q in range(4): e("v_exp_f32 v%d, -v%d" % (FCT[q], D[q]))
        for q in range(4):
            for k in range(8):
                e("v_sub_f32 v%d, v%d, v%d" % (S(0) + 8 * q + k, S(0) + 8 * q + k, D[q]))
                e("v_sub_f32 v%d, v%d, v%d" % (S(1) + 8 * q + k, S(1) + 8 * q + k, D[q]))
            for k in range(4):
                e("v_sub_f32 v%d, v%d, v%d" % (NM(q) + k, NM(q) + k, D[q]))
                e("v_mul_f32 v%d, v%d, v%d" % (LAC[q] + k, LAC[q] + k, FCT[q]))
        for f in range(8):
            for q in range(4):
                a0 = OA(f, q)
                for k in range(4): e("v_accvgpr_read_b32 v%d, a%d" % (D[k], a0 + k))
                for k in range(4): e("v_mul_f32 v%d, v%d, v%d" % (D[k], D[k], FCT[q]))
                for k in range(4): e("v_accvgpr_write_b32 a%d, v%d" % (a0 + k, D[k]))
        for q in range(4):
            for k in range(4):
                r = P(1 - p, q) + k
                e("v_lshlrev_b32 v%d, 16, v%d" % (vT, r)); e("v_and_b32 v%d, 0xffff0000, v%d" % (vT + 1, r))
                e("v_mul_f32 v%d, v%d, v%d" % (vT, vT, FCT[q])); e("v_mul_f32 v%d, v%d, v%d" % (vT + 1, vT + 1, FCT[q]))
                e("v_cvt_pk_bf16_f32 v%d, v%d, v%d" % (r, vT, vT + 1))
        for k in range(4): e("v_mov_b32 v%d, 0x3f803f80" % (ONES + k))
        for x in sm_flat(p): e(x)
        e("s_nop 1")
        e("s_setpc_b64 s[%d:%d]" % (sRET, sRET + 1))
    g.L += ['.section .rodata,"a"', ".p2align 6", ".amdhsa_kernel " + KNAME,
            "  .amdhsa_next_free_vgpr 512", "  .amdhsa_next_free_sgpr 102", "  .amdhsa_accum_offset 256",
            "  .amdhsa_group_segment_fixed_size 0", "  .amdhsa_kernarg_size 104", "  .amdhsa_user_sgpr_count 2",
            "  .amdhsa_user_sgpr_kernarg_segment_ptr 1", "  .amdhsa_system_sgpr_workgroup_id_x 1", ".end_amdhsa_kernel"]
    return "\n".join(g.L) + "\n"

if __name__ == "__main__":
    opts = {}
    out = "recurrent_scan__sliding_block_cached__dense_activation_squared_relu__prompt.s"
    for a in sys.argv[1:]:
        if a.startswith("-o"): out = a[2:]
        elif "=" in a:
            k, v = a.split("="); opts[k] = int(v)
        else: opts[a] = True
    open(out, "w").write(gen(opts))
```
